```python
import torch

def _softmax(x, axis=-1):
    return torch.softmax(x, dim=axis)
def _gelu(x):
    return torch.nn.functional.gelu(x, approximate="tanh")
def _silu(x):
    return torch.nn.functional.silu(x)
def _sigmoid(x):
    return torch.sigmoid(x)
def _layernorm(x, axis=-1, eps=1e-5):
    m = x.mean(dim=axis, keepdim=True)
    v = x.var(dim=axis, keepdim=True, unbiased=False)
    return (x - m) / torch.sqrt(v + eps)
def _scatter_add(tgt, idx, src, axis=0):
    return tgt.clone().index_add_(axis, idx, src)
def _segment_sum(src, seg, n):
    out = torch.zeros((n,) + src.shape[1:], dtype=src.dtype)
    return out.index_add_(0, seg, src)
def _pad(x, pw):
    flat = tuple(v for pair in reversed(pw) for v in pair)
    return torch.nn.functional.pad(x, flat)

kernel_name = 'sequential_preLN__ssm_conv_s4d__swiglu_ffn__prompt'

def setup_inputs():

    _w = (lambda a: (lambda t: t.to(torch.bfloat16) if t.is_floating_point() else t)(torch.as_tensor(a)))
    def _A_setup():
        Bsz, L, D, N = 1, 2048, 640, 192
        return {
            "u": _w((lambda *s: torch.randn(*s, dtype=torch.bfloat16) * 0.05)(Bsz, L, D)),
            "log_A_real": _w((lambda *s: torch.randn(*s, dtype=torch.bfloat16) * 6.4)(D, N) * 0.5),
            "A_imag": _w((lambda *s: torch.randn(*s, dtype=torch.bfloat16) * 0.05)(D, N) * 3.14),
            "C_real": _w((lambda *s: torch.randn(*s, dtype=torch.bfloat16) * 0.05)(D, N) / N ** 0.5),
            "C_imag": _w((lambda *s: torch.randn(*s, dtype=torch.bfloat16) * 0.05)(D, N) / N ** 0.5),
            "log_dt": _w((lambda *s: torch.randn(*s, dtype=torch.bfloat16) * 0.05)(D) * 0.5 - 4.0),
            "D_skip": _w((lambda *s: torch.randn(*s, dtype=torch.bfloat16) * 0.05)(D)),
        }
    _A_in = _A_setup()

    def _B_setup():
        B, S, D, F = 1, 2048, 640, 1536
        return {
            "x": _w((lambda *s: torch.randn(*s, dtype=torch.bfloat16) * 0.05)(B, S, D)),
            "w_gate": _w((lambda *s: torch.randn(*s, dtype=torch.bfloat16) * 0.05)(D, F)),
            "w_up": _w((lambda *s: torch.randn(*s, dtype=torch.bfloat16) * 0.05)(D, F)),
            "w_down": _w((lambda *s: torch.randn(*s, dtype=torch.bfloat16) * 0.05)(F, D)),
        }
    _B_in = _B_setup()

    return {
        "A_u": _A_in["u"],
        "A_log_A_real": _A_in["log_A_real"],
        "A_A_imag": _A_in["A_imag"],
        "A_C_real": _A_in["C_real"],
        "A_C_imag": _A_in["C_imag"],
        "A_log_dt": _A_in["log_dt"],
        "A_D_skip": _A_in["D_skip"],
        "B_x": _B_in["x"],
        "B_w_gate": _B_in["w_gate"],
        "B_w_up": _B_in["w_up"],
        "B_w_down": _B_in["w_down"],
    }

def reference(A_u, A_log_A_real, A_A_imag, A_C_real, A_C_imag, A_log_dt, A_D_skip, B_x, B_w_gate, B_w_up, B_w_down):
    def _A_ref(u, log_A_real, A_imag, C_real, C_imag, log_dt, D_skip):
        L = u.shape[1]
        dt = torch.exp(log_dt)
        A = -torch.exp(log_A_real) + 1j * A_imag
        C = (C_real + 1j * C_imag) * dt[:, None]
        pos = (lambda x, dt: x.to(dt))(torch.arange(L), log_dt.dtype)
        P = torch.exp((A * dt[:, None])[:, :, None] * pos[None, None, :])
        K = 2.0 * torch.einsum("dn,dnl->dl", C, P).real
        L2 = 2 * L
        u_t = (lambda x, *d: x.permute(*d))(u, 0, 2, 1)
        Kf = (lambda x, *a, **k: torch.fft.rfft(x.float(), *a, **k))(K, L2)
        Uf = (lambda x, *a, **k: torch.fft.rfft(x.float(), *a, **k))(u_t, L2)
        y = (lambda x, *a, **k: torch.fft.irfft(x, *a, **k).to(torch.bfloat16))(Uf * Kf[None, :, :], L2)[:, :, :L]
        y = (lambda x, *d: x.permute(*d))(y, 0, 2, 1)
        return y + u * D_skip[None, None, :]

    def _B_ref(x, w_gate, w_up, w_down):
        g = _silu(x @ w_gate)
        u = x @ w_up
        return (g * u) @ w_down

    x = A_u
    h = x + _A_ref(_layernorm(x, axis=-1), A_log_A_real, A_A_imag, A_C_real, A_C_imag, A_log_dt, A_D_skip)
    h2 = h + _B_ref(_layernorm(h, axis=-1), B_w_gate, B_w_up, B_w_down)
    return h2
```

```python
import re

TRANS = ("v_exp_f32", "v_log_f32", "v_rcp_f32", "v_rsq_f32", "v_sqrt_f32", "v_sin_f32", "v_cos_f32", "v_rcp_iflag_f32")
RMW = ("v_fmac_", "v_dot2c_", "v_pk_fmac", "v_mac_", "v_writelane")

def regs_of(op):
    op = op.strip().lstrip("-")
    op = re.sub(r"^abs\((.*)\)$", r"\1", op).strip("|")
    m = re.fullmatch(r"([vsa])\[(\d+):(\d+)\]", op)
    if m: return {(m.group(1), i) for i in range(int(m.group(2)), int(m.group(3)) + 1)}
    m = re.fullmatch(r"([vsa])(\d+)", op)
    if m: return {(m.group(1), int(m.group(2)))}
    if op == "vcc": return {("s", "vcc_lo"), ("s", "vcc_hi")}
    if op in ("vcc_lo", "vcc_hi"): return {("s", op)}
    if op == "exec": return {("s", "exec")}
    if op == "m0": return {("s", "m0")}
    return set()

class Ins:
    def __init__(self, text):
        self.text = text
        t = text.split(";")[0].strip()
        self.label = t[:-1] if t.endswith(":") else None
        self.directive = t.startswith(".") and not self.label
        self.wr = set(); self.rd = set(); self.mn = ""; self.ops = []
        self.sc = set(); self.data = set()
        if self.label or self.directive or not t: return
        parts = t.split(None, 1)
        self.mn = mn = parts[0]
        rest = parts[1] if len(parts) > 1 else ""
        toks = [x.strip() for x in re.split(r",(?![^\[]*\])", rest)] if rest else []
        mods = ""
        if toks:
            last = toks[-1].split(None, 1)
            if len(last) > 1 and not last[0].endswith("("):
                toks[-1] = last[0]; mods = last[1]
        self.ops = toks; self.mods = mods
        R = [regs_of(x) for x in toks]
        U = lambda l: set().union(*l) if l else set()
        self.mfma = mn.startswith("v_mfma")
        self.valu = mn.startswith("v_") and not self.mfma
        self.vmem = mn.startswith(("buffer_", "global_", "flat_"))
        self.ds = mn.startswith("ds_")
        self.salu = mn.startswith("s_")
        self.dpp = any(k in mods for k in ("quad_perm", "row_shr", "row_shl", "row_ror", "row_mirror", "row_half_mirror", "row_bcast", "wave_", "row_newbcast"))
        self.lds_dma = self.vmem and re.search(r"\blds\b", mods) is not None
        if self.mfma:
            self.wr = R[0]; self.rd = U(R[1:]); self.ab = R[1] | R[2]; self.sc = R[3]
            self.passes = 8 if "32x32x16" in mn else 4 if "16x16x32" in mn else 2 if "4x4x4" in mn else None
            assert self.passes, mn
        elif self.valu:
            if mn.startswith("v_cmp"):
                self.wr = R[0]; self.rd = U(R[1:])
            elif "permlane" in mn and "swap" in mn:
                self.wr = R[0] | R[1]; self.rd = R[0] | R[1]
            elif mn.startswith(("v_add_co", "v_sub_co", "v_addc_co", "v_subb_co")):
                self.wr = R[0] | R[1]; self.rd = U(R[2:])
            elif mn == "v_nop":
                pass
            else:
                self.wr = R[0]; self.rd = U(R[1:])
                if mn.startswith(RMW) or self.dpp: self.rd |= R[0]
                if mn.startswith("v_cndmask") and len(toks) == 3: self.rd |= regs_of("vcc")
        elif self.ds:
            if mn.startswith("ds_read") or mn.startswith(("ds_bpermute", "ds_permute", "ds_swizzle")):
                self.wr = R[0]; self.rd = U(R[1:])
            else:
                self.rd = U(R)
            if "addtid" in mn: self.rd |= regs_of("m0")
        elif self.vmem:
            if self.lds_dma:
                self.rd = U(R) | regs_of("m0")
            elif "load" in mn:
                self.wr = R[0]; self.rd = U(R[1:])
            elif "atomic" in mn:
                self.rd = U(R)
                if re.search(r"\bsc0\b", mods): self.wr = R[0]
            else:
                self.rd = U(R)
                self.data = R[0] if mn.startswith("buffer_") else R[1]
        elif self.salu:
            if mn.startswith(("s_cmp", "s_cbranch", "s_branch", "s_waitcnt", "s_nop", "s_barrier", "s_endpgm", "s_sleep", "s_setprio", "s_bitcmp")):
                self.rd = U(R)
            else:
                self.wr = R[0] if R else set(); self.rd = U(R[1:])
                if "saveexec" in mn: self.wr |= regs_of("exec")
        self.states = int(toks[0]) + 1 if mn == "s_nop" else 1

def need(p, c):
    n = 0
    V = lambda s: {r for r in s if r[0] in "va"}
    S = lambda s: {r for r in s if r[0] == "s"}
    if p.mfma:
        raw = {2: 5, 4: 8, 8: 12}[p.passes]
        if c.mfma:
            if p.wr & c.ab: n = max(n, raw)
            if p.wr & c.sc:
                n = max(n, ({2: 2, 4: 0, 8: 0} if (p.wr == c.sc and p.passes == c.passes) else {2: 4, 4: 6, 8: 10})[p.passes])
            elif p.wr & c.wr: n = max(n, raw)
        elif c.valu or c.vmem or c.ds:
            if p.wr & (c.rd | c.wr): n = max(n, raw)
            if c.valu and (p.sc & c.wr): n = max(n, {2: 1, 4: 3, 8: 7}[p.passes])
    if p.valu:
        wv, ws = V(p.wr), S(p.wr)
        if c.mfma and wv & c.rd: n = max(n, 2)
        if p.mn.startswith(TRANS) and c.valu and not c.mn.startswith(TRANS) and wv & c.rd: n = max(n, 1)
        if p.mn.startswith("v_dot2") and (c.valu or c.vmem or c.ds) and wv & (c.rd | c.wr):
            same = c.mn == p.mn and not (wv & set().union(*[regs_of(x) for x in c.ops[1:]]))
            if not same: n = max(n, 3)
        if c.valu and ws & c.rd:
            n = max(n, 4 if c.mn.startswith(("v_readlane", "v_writelane")) else 2)
        if c.vmem and ws & c.rd: n = max(n, 5)
        if c.salu and ws & c.rd: n = max(n, 1)
        if c.valu and c.mn.startswith(("v_readlane", "v_readfirstlane")) and wv & c.rd: n = max(n, 1)
        if c.valu and ("permlane" in c.mn or c.dpp) and wv & c.rd: n = max(n, 2)
    if p.salu and ("s", "m0") in p.wr and (c.lds_dma if c.vmem else (c.ds and "addtid" in c.mn)): n = max(n, 1)
    if p.vmem and len(p.data) >= 3 and (p.data & c.wr) and (c.valu or c.mfma): n = max(n, 2)
    return n

def fix_hazards(lines, maxdist=14):
    ins = [Ins(l) for l in lines]
    labels = {x.label: i for i, x in enumerate(ins) if x.label}
    preds = {}
    for i, x in enumerate(ins):
        if x.mn.startswith(("s_cbranch", "s_branch")):
            preds.setdefault(labels[x.ops[0]], []).append(i)
    pad = [0] * len(ins)
    total = 0
    for i, c in enumerate(ins):
        if not c.mn or c.mn in ("s_nop",): continue
        worst = 0
        stack = [(i - 1, 0)]; seen = set()
        while stack:
            j, d = stack.pop()
            while j >= 0 and d < maxdist:
                if (j, d) in seen: break
                seen.add((j, d))
                p = ins[j]
                if p.label:
                    for b in preds.get(j, []): stack.append((b, d))
                    j -= 1; continue
                if p.directive or not p.mn:
                    j -= 1; continue
                if p.mn in ("s_branch", "s_endpgm") and not (j + 1 <= i and False):
                    if not any(j == b for b in []):
                        pass
                q = need(p, c) - d
                if q > worst: worst = q
                d += p.states + pad[j]
                j -= 1
                if j >= 0 and ins[j].mn in ("s_branch", "s_endpgm"): break
        if worst > 0:
            pad[i] = worst; total += worst
    out = []
    for i, x in enumerate(ins):
        if pad[i]: out.append(f"    s_nop {pad[i]-1}")
        out.append(x.text)
    return out, total

class Asm:
    def __init__(self):
        self.lines = []; self.launch = []; self.kds = []; self.uid = 0
    def __call__(self, s=""):
        for l in s.split("\n"):
            l = l.strip()
            if l: self.lines.append(l if l.endswith(":") else "    " + l)
    def label(self, base):
        self.uid += 1
        return f"L_{base}_{self.uid}"
    def begin_kernel(self, name, grid, block, lds):
        self.relaunch(name, grid, block, lds)
        self.lines += [".text", f".globl {name}", ".p2align 8", f".type {name},@function", f"{name}:"]
    def relaunch(self, name, grid, block, lds):
        self.launch.append(f"; @launch kernel={name} grid=({grid},1,1) block=({block},1,1) lds={lds}")
    def end_kernel(self, name, vgpr, agpr=0, sgpr=96):
        acc = (vgpr + 3) // 4 * 4
        nfv = acc + agpr if agpr else vgpr
        self.kds.append(f""".amdhsa_kernel {name}
  .amdhsa_next_free_vgpr {nfv}
  .amdhsa_next_free_sgpr {sgpr}
  .amdhsa_accum_offset {acc}
  .amdhsa_group_segment_fixed_size 0
  .amdhsa_kernarg_size 112
  .amdhsa_user_sgpr_count 2
  .amdhsa_user_sgpr_kernarg_segment_ptr 1
  .amdhsa_system_sgpr_workgroup_id_x 1
  .amdhsa_float_denorm_mode_32 3
  .amdhsa_float_denorm_mode_16_64 3
.end_amdhsa_kernel""")
    def text(self, header="", hazards=True):
        lines = self.lines
        if hazards:
            lines, self.nops = fix_hazards(lines)
        out = []
        if header: out.append(header.rstrip())
        out += self.launch
        out.append('.amdgcn_target "amdgcn-amd-amdhsa--gfx950"')
        out += lines
        out.append('.section .rodata,"a"')
        for kd in self.kds:
            out.append(".p2align 6"); out.append(kd)
        return "\n".join(out) + "\n"
    def srd(self, s, base, nbytes, off=0):
        if off:
            self(f"s_add_u32 s{s}, s{base}, {off}\ns_addc_u32 s{s+1}, s{base+1}, 0\ns_and_b32 s{s+1}, s{s+1}, 0xffff")
        else:
            self(f"s_mov_b32 s{s}, s{base}\ns_and_b32 s{s+1}, s{base+1}, 0xffff")
        self(f"s_mov_b32 s{s+2}, {nbytes}\ns_mov_b32 s{s+3}, 0x20000")
```

```python
from asmlib import Asm
L, D, NM, F = 2048, 640, 192, 1536
WS_U  = 0x000000
WS_X  = 0x280000
WS_K  = 0x500000
WS_H  = 0xA80000
WS_W1 = 0xD00000
WS_W2 = 0x1100000
WS_CS = 0x1300000
WS_HF = 0x1400000
WS_DIAG = 0x1A00000
WS_SIZE = 268435456
KIMG = 8448
LOG2E = "0x3fb8aa3b"; NLOG2E = "0xbfb8aa3b"
ARG = dict(x=0, logA=8, Aim=16, Cr=24, Ci=32, logdt=40, Dsk=48, Wg=64, Wu=72, Wd=80, out=88, dbg=96, ws=104)

class Ctx:
    diag = False

def stamp(a, kidx, slot, wsreg=4, tmp=90):
    if not Ctx.diag: return
    va, vb = Ctx.vtmp
    a(f"""s_memrealtime s[{tmp}:{tmp+1}]
s_lshl_b32 s{tmp+2}, s2, 8
s_lshl_b32 s{tmp+3}, s{Ctx.swave}, 5
s_add_u32 s{tmp+2}, s{tmp+2}, s{tmp+3}
s_add_u32 s{tmp+2}, s{tmp+2}, {WS_DIAG + kidx*0x40000 + slot*4}
s_waitcnt lgkmcnt(0)
v_mov_b32 v{va}, s{tmp+2}
v_mov_b32 v{vb}, s{tmp}
global_store_dword v{va}, v{vb}, s[{wsreg}:{wsreg+1}]""")
```

```python
from gen_common import *

def cmul(a, d, x, y, conj=False):
    if not conj:
        return [f"v_pk_mul_f32 v[{d}:{d+1}], v[{x}:{x+1}], v[{y}:{y+1}] op_sel:[0,0] op_sel_hi:[0,1]",
                f"v_pk_fma_f32 v[{d}:{d+1}], v[{x}:{x+1}], v[{y}:{y+1}], v[{d}:{d+1}] op_sel:[1,1,0] op_sel_hi:[1,0,1] neg_lo:[0,1,0]"]
    return [f"v_pk_mul_f32 v[{d}:{d+1}], v[{x}:{x+1}], v[{y}:{y+1}] op_sel:[0,0] op_sel_hi:[0,1] neg_hi:[0,1]",
            f"v_pk_fma_f32 v[{d}:{d+1}], v[{x}:{x+1}], v[{y}:{y+1}], v[{d}:{d+1}] op_sel:[1,1,0] op_sel_hi:[1,0,1]"]

def interleave(*streams):
    out = []
    streams = [list(s) for s in streams]
    while any(streams):
        for s in streams:
            if s: out.append(s.pop(0))
    return out

TROW = 272
TAB = 32 * TROW

def emit_kgen(a, end):
    a(f"""s_cmp_eq_u32 s20, 3
s_cbranch_scc1 {end}
s_load_dwordx8 s[8:15], s[0:1], 8
s_load_dwordx2 s[16:17], s[0:1], 40
s_sub_u32 s21, s2, 128
s_mul_i32 s23, s21, {NM*2}
s_lshl_b32 s24, s20, 7
s_add_u32 s23, s23, s24
v_lshl_add_u32 v9, v1, 1, s23
s_lshl_b32 s23, s21, 1
s_and_b32 s23, s23, 0xfffffffc
s_mul_i32 m0, s20, {TAB}
s_waitcnt lgkmcnt(0)
global_load_ushort v2, v9, s[8:9]
global_load_ushort v3, v9, s[10:11]
global_load_ushort v4, v9, s[12:13]
global_load_ushort v5, v9, s[14:15]
s_load_dword s22, s[16:17], s23
v_and_b32 v60, 31, v1
v_mul_u32_u24 v60, {TROW}, v60
v_lshrrev_b32 v61, 5, v1
v_lshl_add_u32 v60, v61, 4, v60
v_add_u32 v60, m0, v60
s_and_b32 s24, s21, 1
s_lshl_b32 s24, s24, 4
s_waitcnt lgkmcnt(0)
s_lshr_b32 s22, s22, s24
s_lshl_b32 s22, s22, 16
v_mov_b32 v6, s22
v_mul_f32 v6, {LOG2E}, v6
v_exp_f32 v6, v6
v_mov_b32 v30, 0x3f80
v_cvt_pk_bf16_f32 v6, v6, v6
v_lshlrev_b32 v6, 16, v6
ds_write_addtid_b32 v30 offset:0
v_add_f32 v31, v6, v6
s_waitcnt vmcnt(3)
v_lshlrev_b32 v2, 16, v2
v_mul_f32 v2, {LOG2E}, v2
v_exp_f32 v2, v2
s_waitcnt vmcnt(2)
v_lshlrev_b32 v3, 16, v3
v_mul_f32 v8, v3, v6
v_cvt_pk_bf16_f32 v2, v2, v2
v_mul_f32 v8, 0.15915494, v8
v_lshlrev_b32 v2, 16, v2
v_mul_f32 v7, v2, v6
v_mul_f32 v7, {NLOG2E}, v7""")
    stamp(a, 0, 1)
    def ev(dst, p, t):
        s = []
        if p == "1.0":
            s += [f"v_exp_f32 v{t}, v7", f"v_fract_f32 v{t+1}, v8"]
        else:
            s += [f"v_mul_f32 v{t}, {p}, v7", f"v_mul_f32 v{t+1}, {p}, v8", f"v_exp_f32 v{t}, v{t}", f"v_fract_f32 v{t+1}, v{t+1}"]
        s += [f"v_cos_f32 v{dst}, v{t+1}", f"v_sin_f32 v{dst+1}, v{t+1}", f"v_mul_f32 v{dst}, v{dst}, v{t}", f"v_mul_f32 v{dst+1}, v{dst+1}, v{t}"]
        return s
    E1, E8, E256, E2, E4, E16 = 10, 12, 14, 16, 18, 20
    for l in interleave(ev(E8, "0x41000000", 32), ev(E1, "1.0", 34), ev(E256, "0x43800000", 36)): a(l)
    for l in cmul(a, E16, E8, E8): a(l)
    for l in cmul(a, E2, E1, E1): a(l)
    a("""s_waitcnt vmcnt(0)
v_lshlrev_b32 v4, 16, v4
v_lshlrev_b32 v5, 16, v5
v_mul_f32 v22, v4, v31
v_mul_f32 v23, -v5, v31""")
    for l in cmul(a, E4, E2, E2): a(l)
    G0 = 22
    def put(src, rows, t=56):
        return [f"v_cvt_pk_bf16_f32 v{t}, v{src}, v{src+1}"] + [f"ds_write_addtid_b32 v{t} offset:{r*TROW}" for r in rows]
    def chain(first, c0, p0, p1, t):
        s = put(first, [c0], t); cur = first
        for c in range(c0 + 2, 32, 2):
            nxt = p0 if cur != p0 else p1
            s += cmul(a, nxt, cur, E16) + put(nxt, [c], t); cur = nxt
        return s
    for l in interleave(chain(E8, 1, 24, 26, 56), chain(E16, 2, 28, 32, 57)): a(l)
    for s in range(8): a(f"ds_read_b128 v[{64+4*s}:{67+4*s}], v60 offset:{32*s}")
    row = lambda r, hh: 8*(r >> 2) + 4*hh + (r & 3)
    sG = put(G0, [row(0, 0)]); cur = G0
    for i in range(1, 9):
        nxt = 24 if cur != 24 else 26
        sG += cmul(a, nxt, cur, E1, True) + put(nxt, [row(i, 0)]); cur = nxt
    sS = []
    H = [None, 28, 32, 34, 36, 38, 40, 42]
    sH = []
    prev = G0
    for k in range(1, 8):
        sH += cmul(a, H[k], prev, E256, True); prev = H[k]
    rows0 = {1: [row(0, 1), row(1, 1)], 2: [row(9, 0)], 3: [row(9, 1)], 4: [row(12, 0)], 5: [row(12, 1)], 6: [row(14, 0)], 7: [row(14, 1)]}
    for l in interleave(sG[:len(sG)//2], sH): a(l)
    s1 = put(H[1], rows0[1], 57); cur = H[1]
    for rows in ([row(2, 1)], [row(3, 1), row(4, 1), row(5, 1)], [row(6, 1)], [row(7, 1), row(8, 1)]):
        nxt = 44 if cur != 44 else 46
        s1 += cmul(a, nxt, cur, E2, True) + put(nxt, rows, 57); cur = nxt
    s2 = []
    for k in (2, 3):
        hh = k & 1
        s2 += put(H[k], rows0[k], 58) + cmul(a, 48, H[k], E4, True) + cmul(a, 50, H[k], E8, True) + put(48, [row(10, hh)], 59) + put(50, [row(11, hh)], 58)
    for l in interleave(sG[len(sG)//2:], s1, s2): a(l)
    s4 = []; s5 = []
    for k in (4, 5, 6, 7):
        hh = k & 1; r = 12 if k < 6 else 14
        t = 52 if hh == 0 else 54
        (s4 if hh == 0 else s5).extend(put(H[k], rows0[k], 56+hh) + cmul(a, t, H[k], E8, True) + put(t, [row(r+1, hh)], 58+hh))
    for l in interleave(s4, s5): a(l)
    stamp(a, 0, 2)
    for s in range(8): a(f"ds_read_b128 v[{16+4*s}:{19+4*s}], v60 offset:{32*s}")
    for s in range(8):
        a(f"s_waitcnt lgkmcnt({7-s})")
        a(f"v_mfma_f32_32x32x16_bf16 v[96:111], v[{16+4*s}:{19+4*s}], v[{64+4*s}:{67+4*s}], {'0' if s == 0 else 'v[96:111]'}")
    a(f"""v_and_b32 v2, 31, v1
v_lshlrev_b32 v2, 5, v2
v_lshl_add_u32 v2, v61, 4, v2
s_mul_i32 s23, s21, {KIMG}
s_add_u32 s23, s23, {WS_K}
s_add_u32 s26, s4, s23
s_addc_u32 s27, s5, 0
v_lshlrev_b32 v3, 2, v1
v_and_b32 v4, 1, v1
v_cmp_eq_u32 vcc, 1, v4""")
    own = {0: list(range(0, 9)), 1: [9, 10, 11], 2: [12, 13, 14, 15]}
    labs = [a.label("kg_w") for _ in range(3)]
    a(f"s_cmp_eq_u32 s20, 1\ns_cbranch_scc1 {labs[1]}\ns_cmp_eq_u32 s20, 2\ns_cbranch_scc1 {labs[2]}")
    for p in range(3):
        a(f"{labs[p]}:")
        for r in range(16):
            if r not in own[p]: a(f"ds_write_addtid_b32 v{96+r} offset:{r*256}")
        a("s_waitcnt lgkmcnt(0)\ns_barrier")
        others = [q for q in range(3) if q != p]
        for i, r in enumerate(own[p]):
            for j, q in enumerate(others): a(f"ds_read_b32 v{16+2*i+j}, v3 offset:{q*TAB + r*256}")
        n = len(own[p])
        for i, r in enumerate(own[p]):
            a(f"s_waitcnt lgkmcnt({min(15, 2*(n-1-i))})")
            a(f"v_add_f32 v{16+2*i}, v{16+2*i}, v{17+2*i}\nv_add_f32 v{96+r}, v{96+r}, v{16+2*i}")
        def out(slot, V, base):
            for i in range(1, 9): a(f"v_cvt_pk_bf16_f32 v{base+i-1}, v{V[i]}, v{V[i-1]}")
            for i in range(4): a(f"v_permlane32_swap_b32 v{base+i}, v{base+4+i}")
            a(f"global_store_dwordx4 v2, v[{base}:{base+3}], s[26:27] offset:{256+2048*slot} sc1" if 256+2048*slot < 4096 else
              f"v_add_u32 v5, {2048*slot}, v2\nglobal_store_dwordx4 v5, v[{base}:{base+3}], s[26:27] offset:256 sc1")
            a(f"global_store_dwordx4 v2, v[{base+4}:{base+7}], s[26:27] offset:{1280+2048*slot} sc1" if 1280+2048*slot < 4096 else
              f"global_store_dwordx4 v5, v[{base+4}:{base+7}], s[26:27] offset:1280 sc1")
        if p == 0:
            a("""v_mov_b32 v6, 0
v_cvt_pk_bf16_f32 v6, v96, v6
v_cmp_eq_u32 vcc, 0, v1
v_sub_u32 v7, 252, v3
v_cndmask_b32 v6, 0, v6, vcc
global_store_dword v7, v6, s[26:27] sc1""")
            out(0, [96+i for i in range(9)], 40)
        elif p == 1:
            out(1, [105]*3 + [106]*3 + [107]*3, 40)
        else:
            for slot, r in ((2, 12), (3, 14)):
                a(f"v_cndmask_b32 v6, v{96+r}, v{97+r}, vcc")
                out(slot, [96+r]*4 + [6] + [97+r]*4, 40 + 8*(slot-2))
        stamp(a, 0, 3)
        a(f"s_branch {end}")

def emit_ln(a, end):
    a(f"""s_load_dwordx2 s[6:7], s[0:1], 0
v_lshrrev_b32 v2, 2, v1
v_mul_u32_u24 v3, 1280, v2
v_and_b32 v4, 3, v1
v_lshl_add_u32 v3, v4, 4, v3
s_mul_i32 s21, s2, {16*1280}
s_mul_i32 s22, s20, 320
s_add_u32 s21, s21, s22
s_mul_i32 s23, s20, 5120
s_waitcnt lgkmcnt(0)""")
    a.srd(8, 6, L*D*2)
    for i in range(5):
        a(f"s_add_u32 m0, s23, {i*960}\ns_nop 0\nbuffer_load_dwordx4 v3, s[8:11], s21 offen offset:{64*i} lds")
    a(f"""v_lshl_add_u32 v5, v1, 4, s23
v_bfe_u32 v6, v1, 4, 1
v_lshrrev_b32 v7, 5, v1
v_bfe_u32 v8, v1, 2, 2
v_lshl_add_u32 v8, v7, 3, v8
v_lshlrev_b32 v8, 6, v8
v_lshl_add_u32 v8, v6, 5, v8
v_lshl_add_u32 v8, v4, 3, v8
v_add_u32 v8, s23, v8
v_and_b32 v9, 15, v1
v_lshl_add_u32 v9, v6, 4, v9
v_lshlrev_b32 v9, 5, v9
v_lshl_add_u32 v9, v7, 4, v9
s_mul_i32 s24, s2, 20480
s_add_u32 s24, s24, s23
s_add_u32 s26, s4, s24
s_addc_u32 s27, s5, 0
s_add_u32 s28, s26, {WS_X}
s_addc_u32 s29, s27, 0
v_add_u32 v10, 4096, v9
v_mov_b32 v11, 0
v_mov_b32 v12, 0
v_mov_b32 v13, 0
v_mov_b32 v14, 0
s_mov_b32 s25, 0x3f803f80
s_lshl_b32 s30, s20, 7
v_lshl_add_u32 v15, v2, 3, s30
v_lshlrev_b32 v2, 3, v2
s_waitcnt vmcnt(0)""")
    stamp(a, 0, 1)
    for i in range(5): a(f"ds_read_b128 v[{16+4*i}:{19+4*i}], v5 offset:{1024*i}")
    for i in range(5):
        a(f"ds_read_b64_tr_b16 v[{36+4*i}:{37+4*i}], v8 offset:{1024*i}\nds_read_b64_tr_b16 v[{38+4*i}:{39+4*i}], v8 offset:{1024*i+256}")
    for i in range(5):
        a(f"s_waitcnt lgkmcnt({14-i})")
        for j in range(4):
            r = 16+4*i+j
            a(f"v_dot2c_f32_bf16 v{12-(j&1)}, s25, v{r}\nv_dot2c_f32_bf16 v{13+(j&1)}, v{r}, v{r}")
    a("""v_add_f32 v12, v11, v12
v_add_f32 v13, v13, v14
v_add_f32_dpp v12, v12, v12 quad_perm:[1,0,3,2] row_mask:0xf bank_mask:0xf
v_add_f32_dpp v13, v13, v13 quad_perm:[1,0,3,2] row_mask:0xf bank_mask:0xf
v_add_f32_dpp v12, v12, v12 quad_perm:[2,3,0,1] row_mask:0xf bank_mask:0xf
v_add_f32_dpp v13, v13, v13 quad_perm:[2,3,0,1] row_mask:0xf bank_mask:0xf
ds_write_b64 v15, v[12:13] offset:20480""")
    def xstore(base, i, sb):
        va, off = (9, 1024*i) if i < 4 else (10, 0)
        a(f"global_store_dwordx4 v{va}, v[{base+4*i}:{base+4*i+3}], s[{sb}:{sb+1}] offset:{off} sc1")
    a("s_waitcnt lgkmcnt(0)\ns_barrier")
    for q in range(4): a(f"ds_read_b64 v[{56+2*q}:{57+2*q}], v2 offset:{20480+128*q}")
    for i in range(5): xstore(36, i, 28)
    a(f"""s_waitcnt lgkmcnt(0)
v_add_f32 v56, v56, v58
v_add_f32 v57, v57, v59
v_add_f32 v60, v60, v62
v_add_f32 v61, v61, v63
v_add_f32 v56, v56, v60
v_add_f32 v57, v57, v61
v_mul_f32 v56, 0x3acccccd, v56
v_mul_f32 v57, 0x3acccccd, v57
v_fma_f32 v57, -v56, v56, v57
v_max_f32 v57, 0, v57
v_cvt_pk_bf16_f32 v56, v56, v57
v_and_b32 v57, 0xffff0000, v56
v_lshlrev_b32 v56, 16, v56
v_add_f32 v57, 0x3727c5ac, v57
v_cvt_pk_bf16_f32 v57, v57, v57
v_lshlrev_b32 v57, 16, v57
v_sqrt_f32 v57, v57
s_nop 0
v_cvt_pk_bf16_f32 v57, v57, v57
v_lshlrev_b32 v57, 16, v57
v_rcp_f32 v57, v57""")
    for i in range(5):
        st = []
        for j in range(4):
            r = 16+4*i+j; t = 60 + 2*j
            st.append([f"v_lshlrev_b32 v{t}, 16, v{r}", f"v_and_b32 v{t+1}, 0xffff0000, v{r}",
                       f"v_sub_f32 v{t}, v{t}, v56", f"v_sub_f32 v{t+1}, v{t+1}, v56",
                       f"v_cvt_pk_bf16_f32 v{r}, v{t}, v{t+1}",
                       f"v_lshlrev_b32 v{t}, 16, v{r}", f"v_and_b32 v{t+1}, 0xffff0000, v{r}",
                       f"v_mul_f32 v{t}, v{t}, v57", f"v_mul_f32 v{t+1}, v{t+1}, v57",
                       f"v_cvt_pk_bf16_f32 v{r}, v{t}, v{t+1}"])
        for l in interleave(*st): a(l)
        a(f"ds_write_b128 v5, v[{16+4*i}:{19+4*i}] offset:{1024*i}")
        a(f"ds_read_b64_tr_b16 v[{68+4*i}:{69+4*i}], v8 offset:{1024*i}\nds_read_b64_tr_b16 v[{70+4*i}:{71+4*i}], v8 offset:{1024*i+256}")
        if i > 0:
            a("s_waitcnt lgkmcnt(3)"); xstore(68, i-1, 26)
    a("s_waitcnt lgkmcnt(0)"); xstore(68, 4, 26)
    stamp(a, 0, 3)
    a(f"s_branch {end}")

def emit_l1(a):
    name = "prep_kernel"
    Ctx.swave = 20; Ctx.vtmp = (112, 113)
    a.begin_kernel(name, 768, 256, 3*TAB)
    end = a.label("l1_end"); kg = a.label("l1_kgen")
    a(f"""s_cmp_ge_u32 s2, 768
s_cbranch_scc1 {end}
s_load_dwordx2 s[4:5], s[0:1], 104
v_lshrrev_b32 v2, 6, v0
v_and_b32 v1, 63, v0
v_readfirstlane_b32 s20, v2""")
    if Ctx.diag: a("s_waitcnt lgkmcnt(0)")
    stamp(a, 0, 0)
    a(f"s_cmp_ge_u32 s2, 128\ns_cbranch_scc1 {kg}")
    emit_ln(a, end)
    a(f"{kg}:")
    emit_kgen(a, end)
    a(f"{end}:\ns_endpgm")
    a.end_kernel(name, 116 if Ctx.diag else 112)
```

```python
from gen_common import *
from sched import Sched
from gen_l1 import interleave

CW = 17152
UO, XO = 8960, 13056
NCONV, NF1, NF2 = 160, 192, 120

def emit_conv(a, end):
    a(f"""s_load_dwordx2 s[6:7], s[0:1], 48
s_lshl_b32 s21, s2, 2
s_add_u32 s21, s21, s20
s_mul_i32 s22, s20, {CW}
v_lshrrev_b32 v2, 1, v1
v_mul_u32_u24 v2, 20480, v2
v_and_b32 v3, 1, v1
v_lshl_add_u32 v2, v3, 4, v2
v_lshlrev_b32 v3, 4, v1
v_lshlrev_b32 v4, 2, v1
s_lshl_b32 s23, s21, 5
s_mul_i32 s24, s21, {KIMG}
s_add_u32 s24, s24, {WS_K}
s_lshl_b32 s25, s21, 1
s_and_b32 s25, s25, 0xfffffffc
s_add_u32 m0, s22, {UO}
s_waitcnt lgkmcnt(0)""")
    a.srd(8, 4, WS_SIZE)
    a("s_load_dword s26, s[6:7], s25")
    for k in range(4):
        if k: a(f"s_add_u32 m0, m0, 1024")
        a(f"s_add_u32 s27, s23, {WS_U + k*32*20480}\nbuffer_load_dwordx4 v2, s[8:11], s27 offen lds")
    a(f"s_mov_b32 m0, s22\ns_add_u32 s27, s24, 256\nbuffer_load_dword v4, s[8:11], s24 offen lds\ns_add_u32 m0, s22, 256")
    for k in range(8):
        if k == 4: a("s_add_u32 m0, m0, 4096\ns_add_u32 s27, s27, 4096")
        a(f"buffer_load_dwordx4 v3, s[8:11], s27 offen offset:{1024*(k%4)} lds")
    a(f"s_add_u32 m0, s22, {XO}")
    for k in range(4):
        if k: a(f"s_add_u32 m0, m0, 1024")
        a(f"s_add_u32 s27, s23, {WS_X + k*32*20480}\nbuffer_load_dwordx4 v2, s[8:11], s27 offen lds")
    VA, VB, VE, VO = 176, 184, 185, 5
    a(f"""v_mov_b32 v6, 0
v_mov_b32 v7, 0
v_lshl_add_u32 v8, v1, 3, s22
ds_write_b64 v8, v[6:7] offset:{KIMG}
v_and_b32 v9, 15, v1
v_lshrrev_b32 v10, 4, v1
v_lshlrev_b32 v11, 3, v10
v_sub_u32 v11, v9, v11
v_add_u32 v11, 73, v11
v_lshl_add_u32 v{VA}, v11, 2, s22""")
    for mm in range(1, 8): a(f"v_add_u32 v{VA+mm}, {1024*mm}, v{VA}")
    a(f"""v_lshlrev_b32 v11, 5, v9
v_lshl_add_u32 v12, v10, 4, v11
s_add_u32 s27, s22, {UO - 480}
v_add_u32 v{VB}, s27, v12
v_lshl_add_u32 v12, v10, 3, v11
s_add_u32 s27, s22, {UO}
v_add_u32 v{VE}, s27, v12
v_and_b32 v12, 1, v10
v_lshl_add_u32 v11, v12, 9, v11
v_lshrrev_b32 v12, 1, v10
v_lshl_add_u32 v{VO}, v12, 4, v11
s_lshl_b32 s27, s21, 12
s_add_u32 s27, s27, {WS_H}
s_add_u32 s28, s4, s27
s_addc_u32 s29, s5, 0
s_and_b32 s25, s21, 1
s_lshl_b32 s25, s25, 4
s_waitcnt lgkmcnt(0)
s_lshr_b32 s26, s26, s25
s_lshl_b32 s26, s26, 16
s_waitcnt vmcnt(4)""")
    stamp(a, 1, 1)
    S = Sched(a, 2)
    AS = [48, 112]; BS = [80, 144]
    def loads(rho):
        st = rho & 1; out = []
        for n in range(8):
            b = BS[st] + 4*n; r = AS[st] + 4*n
            out.append((f"ds_read_b128 v[{b}:{b+3}], v{VB} offset:{512*n + 448 - 64*rho}", ("B", rho, n)))
            out.append((f"ds_read2_b32 v[{r}:{r+1}], v{VA+n} offset0:{32*rho+6} offset1:{32*rho+4}", None))
            out.append((f"ds_read2_b32 v[{r+2}:{r+3}], v{VA+n} offset0:{32*rho+2} offset1:{32*rho}", ("A", rho, n)))
        return out
    order = []
    for n in range(8):
        sh = [(n, j) for j in range(n)] + [(m, n) for m in range(n)] + [(n, n)]
        sh = [p for p in sh if p[0] + p[1] <= 7]
        sh.sort(key=lambda p: p[0] + p[1])
        order += sh
    assert len(order) == 36
    l0 = loads(0)
    for t, tag in l0[:15]: S.ds(t, tag)
    for t, tag in l0[15:]: S.add(t, 2, tag, ds=True, hi=True)
    T1, XF, RAW = 186, 218, 12
    def pre(T):
        r = RAW + 2*(T & 1) if False else RAW
        S.add(f"ds_read_b64 v[12:13], v{VE} offset:{512*T}", 2, ("u", T), ds=True)
        S.add(f"ds_read_b64 v[14:15], v{VE} offset:{512*T + XO - UO}", 2, ("x", T), ds=True)
        t = T1 + 4*T; x = XF + 4*T
        first = True
        for l in [f"v_lshlrev_b32 v{t}, 16, v12", f"v_and_b32 v{t+1}, 0xffff0000, v12", f"v_lshlrev_b32 v{t+2}, 16, v13", f"v_and_b32 v{t+3}, 0xffff0000, v13"]:
            S.add(l, needs=[("u", T)])
        for i in range(4): S.add(f"v_mul_f32 v{t+i}, s26, v{t+i}")
        S.add(f"v_cvt_pk_bf16_f32 v12, v{t}, v{t+1}"); S.add(f"v_cvt_pk_bf16_f32 v13, v{t+2}, v{t+3}")
        for l in [f"v_lshlrev_b32 v{x}, 16, v14", f"v_and_b32 v{x+1}, 0xffff0000, v14", f"v_lshlrev_b32 v{x+2}, 16, v15", f"v_and_b32 v{x+3}, 0xffff0000, v15"]:
            S.add(l, needs=[("x", T)])
        for l in [f"v_lshlrev_b32 v{t}, 16, v12", f"v_and_b32 v{t+1}, 0xffff0000, v12", f"v_lshlrev_b32 v{t+2}, 16, v13", f"v_and_b32 v{t+3}, 0xffff0000, v13"]:
            S.add(l)
    def fin(T, after):
        c = 16 + 4*T; t = T1 + 4*T; x = XF + 4*T; o = 48 + 4*(T >> 1) + 2*(T & 1)
        def unpack(): return [f"v_lshlrev_b32 v{c}, 16, v{o}", f"v_and_b32 v{c+1}, 0xffff0000, v{o}", f"v_lshlrev_b32 v{c+2}, 16, v{o+1}", f"v_and_b32 v{c+3}, 0xffff0000, v{o+1}"]
        def pack(): return [f"v_cvt_pk_bf16_f32 v{o}, v{c}, v{c+1}", f"v_cvt_pk_bf16_f32 v{o+1}, v{c+2}, v{c+3}"]
        ls = pack() + unpack() + [f"v_add_f32 v{c+i}, v{c+i}, v{t+i}" for i in range(4)] + pack() + unpack() + [f"v_add_f32 v{c+i}, v{c+i}, v{x+i}" for i in range(4)] + pack()
        for l in ls: S.add(l, after=after)
        if T & 1:
            q = 48 + 4*(T >> 1)
            S.add("s_nop 0", after=after)
            S.add(f"v_permlane16_swap_b32 v{q}, v{q+2}", after=after); S.add(f"v_permlane16_swap_b32 v{q+1}, v{q+3}", after=after)
            S.add(f"global_store_dwordx4 v{VO}, v[{q}:{q+3}], s[28:29] offset:{512*(T-1)} sc1", after=after)
    started = set()
    for rho in range(8):
        st = rho & 1
        if rho < 7:
            for t, tag in loads(rho + 1): S.add(t, 2, tag, ds=True, hi=True)
        if rho == 1: S.add("s_waitcnt vmcnt(0)", 0)
        if 1 <= rho <= 4: pre(2*rho - 2); pre(2*rho - 1)
        if rho == 7:
            last = {}
            for i, (mm, j) in enumerate(order): last[mm + j] = S.n + i
            for T in range(8): fin(T, last[T] + 5)
        for (mm, j) in order:
            T = mm + j; c = 16 + 4*T
            src = f"v[{c}:{c+3}]" if T in started else "0"
            started.add(T)
            S.main(f"v_mfma_f32_16x16x32_bf16 v[{c}:{c+3}], v[{AS[st]+4*mm}:{AS[st]+4*mm+3}], v[{BS[st]+4*j}:{BS[st]+4*j+3}], {src}",
                   needs=[("A", rho, mm), ("B", rho, j)])
    stamp(a, 1, 2)
    S.flush()
    stamp(a, 1, 3)
    a(f"s_branch {end}")

def emit_fmt1(a, end):
    a(f"""s_load_dwordx4 s[12:15], s[0:1], 64
s_sub_u32 s21, s2, {NCONV}
s_mul_i32 s22, s21, 2731
s_lshr_b32 s22, s22, 16
s_mul_i32 s23, s22, 24
s_sub_u32 s23, s21, s23
v_lshrrev_b32 v2, 3, v1
v_mul_u32_u24 v2, 3072, v2
v_and_b32 v3, 7, v1
v_lshl_add_u32 v2, v3, 4, v2
s_and_b32 s24, s20, 1
s_mul_i32 s24, s24, {40*3072}
s_mul_i32 s25, s22, {80*3072}
s_add_u32 s24, s24, s25
s_lshl_b32 s25, s23, 7
s_add_u32 s24, s24, s25
s_mul_i32 m0, s20, 5120
s_cmp_ge_u32 s20, 2
s_waitcnt lgkmcnt(0)
s_cselect_b32 s12, s14, s12
s_cselect_b32 s13, s15, s13""")
    a.srd(8, 12, D*F*2)
    for j in range(5):
        if j: a(f"s_add_u32 m0, m0, 1024\ns_add_u32 s24, s24, {8*3072}")
        a("buffer_load_dwordx4 v2, s[8:11], s24 offen lds")
    a(f"""v_bfe_u32 v3, v1, 4, 1
v_mul_u32_u24 v4, 10240, v3
v_lshrrev_b32 v3, 5, v1
v_lshl_add_u32 v4, v3, 10, v4
v_bfe_u32 v3, v1, 2, 2
v_lshl_add_u32 v4, v3, 7, v4
v_and_b32 v3, 3, v1
v_lshl_add_u32 v4, v3, 3, v4
s_lshl_b32 s24, s20, 5
v_add_u32 v4, s24, v4
s_lshl_b32 s23, s23, 2
s_add_u32 s23, s23, s20
s_mul_i32 s24, s23, 43
s_lshr_b32 s24, s24, 8
s_mul_i32 s25, s24, 6
s_sub_u32 s25, s23, s25
s_mul_i32 s24, s24, 40
s_mul_i32 s26, s22, 5
s_add_u32 s24, s24, s26
s_mul_i32 s24, s24, 6
s_add_u32 s24, s24, s25
s_lshl_b32 s24, s24, 10
s_add_u32 s24, s24, {WS_W1}
v_lshlrev_b32 v5, 4, v1
s_mul_i32 s26, s22, 96
s_add_u32 s26, s26, s23
s_lshl_b32 s26, s26, 7
s_add_u32 s26, s26, {WS_CS}
v_and_b32 v6, 31, v1
v_lshlrev_b32 v6, 2, v6
v_mov_b32 v8, 0
v_mov_b32 v9, 0
s_mov_b32 s27, 0x3f803f80""")
    a.srd(12, 4, WS_SIZE)
    a("s_waitcnt vmcnt(0)\ns_barrier")
    stamp(a, 1, 1)
    for s in range(5):
        a(f"ds_read_b64_tr_b16 v[{16+4*s}:{17+4*s}], v4 offset:{2048*s}\nds_read_b64_tr_b16 v[{18+4*s}:{19+4*s}], v4 offset:{2048*s+512}")
    for s in range(5):
        a(f"s_waitcnt lgkmcnt({8-2*s})\nbuffer_store_dwordx4 v[{16+4*s}:{19+4*s}], v5, s[12:15], s24 offen sc1")
        if s < 4: a(f"s_add_u32 s24, s24, 6144")
        for j in range(4): a(f"v_dot2c_f32_bf16 v{8+(j&1)}, s27, v{16+4*s+j}")
    a(f"""v_add_f32 v8, v8, v9
v_mov_b32 v9, v8
v_permlane32_swap_b32 v8, v9
v_add_f32 v8, v8, v9
s_mov_b64 exec, 0xffffffff
buffer_store_dword v8, v6, s[12:15], s26 offen sc1""")
    stamp(a, 1, 3)
    a(f"s_branch {end}")

def emit_fmt2(a, end):
    a(f"""s_load_dwordx2 s[12:13], s[0:1], 80
s_sub_u32 s21, s2, {NCONV + NF1}
s_mul_i32 s22, s21, 6554
s_lshr_b32 s22, s22, 16
s_mul_i32 s23, s22, 10
s_sub_u32 s23, s21, s23
v_lshrrev_b32 v2, 3, v1
v_mul_u32_u24 v2, 1280, v2
v_and_b32 v3, 7, v1
v_lshl_add_u32 v2, v3, 4, v2
s_mul_i32 s24, s20, {32*1280}
s_mul_i32 s25, s22, {128*1280}
s_add_u32 s24, s24, s25
s_lshl_b32 s25, s23, 7
s_add_u32 s24, s24, s25
s_lshl_b32 m0, s20, 12
s_waitcnt lgkmcnt(0)""")
    a.srd(8, 12, D*F*2)
    for j in range(4):
        if j: a(f"s_add_u32 m0, m0, 1024\ns_add_u32 s24, s24, {8*1280}")
        a("buffer_load_dwordx4 v2, s[8:11], s24 offen lds")
    a(f"""v_lshrrev_b32 v3, 5, v1
v_lshlrev_b32 v4, 11, v3
v_bfe_u32 v3, v1, 4, 1
v_lshl_add_u32 v4, v3, 9, v4
v_bfe_u32 v3, v1, 2, 2
v_lshl_add_u32 v4, v3, 7, v4
v_and_b32 v3, 3, v1
v_lshl_add_u32 v4, v3, 3, v4
s_lshl_b32 s24, s20, 5
v_add_u32 v4, s24, v4
s_lshl_b32 s23, s23, 2
s_add_u32 s23, s23, s20
s_mul_i32 s24, s23, 52
s_lshr_b32 s24, s24, 8
s_mul_i32 s25, s24, 5
s_sub_u32 s25, s23, s25
s_mul_i32 s24, s24, 48
s_lshl_b32 s26, s22, 2
s_add_u32 s24, s24, s26
s_mul_i32 s24, s24, 5
s_add_u32 s24, s24, s25
s_lshl_b32 s24, s24, 10
s_add_u32 s24, s24, {WS_W2}
v_lshlrev_b32 v5, 4, v1""")
    a.srd(12, 4, WS_SIZE)
    a("s_waitcnt vmcnt(0)\ns_barrier")
    stamp(a, 1, 1)
    for s in range(4):
        a(f"ds_read_b64_tr_b16 v[{16+4*s}:{17+4*s}], v4 offset:{4096*s}\nds_read_b64_tr_b16 v[{18+4*s}:{19+4*s}], v4 offset:{4096*s+1024}")
    for s in range(4):
        a(f"s_waitcnt lgkmcnt({6-2*s})\nbuffer_store_dwordx4 v[{16+4*s}:{19+4*s}], v5, s[12:15], s24 offen sc1")
        if s < 3: a(f"s_add_u32 s24, s24, 5120")
    stamp(a, 1, 3)
    a(f"s_branch {end}")

def emit_l2(a):
    name = "conv_kernel"
    Ctx.swave = 30; Ctx.vtmp = (250, 251)
    n = NCONV + NF1 + NF2
    a.begin_kernel(name, n, 256, 4*CW)
    end = a.label("l2_end"); f1 = a.label("l2_f1"); f2 = a.label("l2_f2")
    a(f"""s_cmp_ge_u32 s2, {n}
s_cbranch_scc1 {end}
s_load_dwordx2 s[4:5], s[0:1], 104
v_lshrrev_b32 v2, 6, v0
v_and_b32 v1, 63, v0
v_readfirstlane_b32 s20, v2""")
    if Ctx.diag: a("s_mov_b32 s30, s20\ns_waitcnt lgkmcnt(0)")
    stamp(a, 1, 0)
    a(f"s_cmp_ge_u32 s2, {NCONV+NF1}\ns_cbranch_scc1 {f2}\ns_cmp_ge_u32 s2, {NCONV}\ns_cbranch_scc1 {f1}")
    emit_conv(a, end)
    a(f"{f1}:"); emit_fmt1(a, end)
    a(f"{f2}:"); emit_fmt2(a, end)
    a(f"{end}:\ns_endpgm")
    a.end_kernel(name, 252 if Ctx.diag else 250)
```

```python
from gen_common import *
from sched import Sched
from gen_l1 import interleave

R = 7
NS = 20
WS_SLOT = 12288
LH = R * WS_SLOT
LC = LH + 2*8192
LP = LC + 8192
LT1 = LP + 4096
LT2 = LT1 + 2048
LDS3 = LT2 + 1024

class Vm:
    def __init__(self, a): self.a = a; self.issued = 0; self.done = 0; self.tags = {}
    def op(self, text, tag=None):
        self.a(text); self.issued += 1
        if tag is not None: self.tags[tag] = self.issued
    def wait(self, tag):
        k = self.tags[tag]
        if k > self.done:
            n = min(63, self.issued - k); self.a(f"s_waitcnt vmcnt({n})"); self.done = self.issued - n

def ln_finalize(a, s, q, t):
    a(f"""v_mul_f32 v{s}, 0x3acccccd, v{s}
v_mul_f32 v{q}, 0x3acccccd, v{q}
v_fma_f32 v{q}, -v{s}, v{s}, v{q}
v_max_f32 v{q}, 0, v{q}
v_cvt_pk_bf16_f32 v{s}, v{s}, v{q}
v_and_b32 v{q}, 0xffff0000, v{s}
v_lshlrev_b32 v{s}, 16, v{s}
v_add_f32 v{q}, 0x3727c5ac, v{q}
v_cvt_pk_bf16_f32 v{q}, v{q}, v{q}
v_lshlrev_b32 v{q}, 16, v{q}
v_sqrt_f32 v{q}, v{q}
s_nop 0
v_cvt_pk_bf16_f32 v{q}, v{q}, v{q}
v_lshlrev_b32 v{q}, 16, v{q}""")

def emit_helper(a, end):
    HR = 32
    SA, QA, TMP = 96, 104, 112
    a(f"""s_sub_u32 s23, s20, 4
v_lshlrev_b32 v2, 4, v1
v_lshrrev_b32 v3, 4, v1
v_and_b32 v4, 15, v1
v_lshlrev_b32 v5, 12, v3
v_lshl_add_u32 v5, v4, 4, v5
v_lshlrev_b32 v6, 2, v3
v_xor_b32 v6, v6, v4
v_lshlrev_b32 v6, 4, v6
v_lshl_add_u32 v6, v3, 8, v6
s_lshl_b32 s24, s23, 11
s_add_u32 s24, s24, {LH}
v_add_u32 v6, s24, v6
s_mul_i32 s25, s22, {40*6144}
s_mul_i32 s26, s23, 3072
s_add_u32 s25, s25, s26
s_add_u32 s25, s25, {WS_W1}
s_lshl_b32 s27, s23, 15
s_lshl_b32 s28, s21, 8
s_add_u32 s27, s27, s28
s_add_u32 s27, s27, {WS_H}
s_add_u32 s28, s27, 16384
s_waitcnt lgkmcnt(0)""")
    a.srd(8, 4, WS_SIZE)
    V = Vm(a)
    def issue(t):
        slot = t % R; r = HR + 8*slot
        a(f"s_add_u32 m0, s26, {slot*WS_SLOT}")
        V.op(f"buffer_load_dwordx4 v[{r}:{r+3}], v5, s[8:11], s27 offen")
        V.op(f"buffer_load_dwordx4 v[{r+4}:{r+7}], v5, s[8:11], s28 offen")
        for j in range(3): V.op(f"buffer_load_dwordx4 v2, s[8:11], s25 offen offset:{1024*j} lds", (t if j == 2 else None))
        if t < NS - 1: a(f"s_add_u32 s25, s25, {WS_SLOT}\ns_add_u32 s27, s27, {32*4096}\ns_add_u32 s28, s28, {32*4096}")
    def write(t):
        r = HR + 8*(t % R); o = (t & 1)*8192
        V.wait(t)
        a(f"ds_write_b128 v6, v[{r}:{r+3}] offset:{o}\nds_write_b128 v6, v[{r+4}:{r+7}] offset:{o+1024}")
    def stats(t):
        r = HR + 8*(t % R)
        for q in range(2):
            st = []
            for j in range(4):
                x = r + 4*q + j; t0 = TMP + 2*j; e = 2*j
                if t == 0 and q == 0:
                    st.append([f"v_lshlrev_b32 v{SA+e}, 16, v{x}", f"v_and_b32 v{SA+e+1}, 0xffff0000, v{x}",
                               f"v_mul_f32 v{QA+e}, v{SA+e}, v{SA+e}", f"v_mul_f32 v{QA+e+1}, v{SA+e+1}, v{SA+e+1}"])
                else:
                    st.append([f"v_lshlrev_b32 v{t0}, 16, v{x}", f"v_and_b32 v{t0+1}, 0xffff0000, v{x}",
                               f"v_add_f32 v{SA+e}, v{SA+e}, v{t0}", f"v_add_f32 v{SA+e+1}, v{SA+e+1}, v{t0+1}",
                               f"v_fmac_f32 v{QA+e}, v{t0}, v{t0}", f"v_fmac_f32 v{QA+e+1}, v{t0+1}, v{t0+1}"])
            for l in interleave(*st): a(l)
    for t in range(R - 1): issue(t)
    a(f"""v_and_b32 v7, 0xff, v0
v_lshlrev_b32 v8, 2, v7
s_mul_i32 s29, s22, 768
s_add_u32 s29, s29, {WS_CS}
v_lshrrev_b32 v9, 5, v7
v_lshlrev_b32 v9, 10, v9
v_and_b32 v10, 31, v7
v_lshl_add_u32 v9, v10, 4, v9
v_add_u32 v9, {LC}, v9
v_lshrrev_b32 v10, 1, v3
v_lshlrev_b32 v10, 9, v10
v_lshl_add_u32 v10, v4, 5, v10
v_and_b32 v11, 1, v3
v_lshl_add_u32 v10, v11, 4, v10
s_lshl_b32 s30, s23, 10
s_add_u32 s30, s30, {LP}
v_add_u32 v10, s30, v10
v_and_b32 v11, 0x7f, v7""")
    write(0)
    a("s_waitcnt lgkmcnt(0)\ns_barrier")
    stamp(a, 2, 1)
    for p in range(NS - 1):
        stats(p) if p == 0 else None
        if p - 1 + R < NS: issue(p - 1 + R)
        if p == NS - R + 1:
            for kc in range(8):
                V.op(f"buffer_load_dword v{16+kc}, v8, s[8:11], s29 offen", "cs")
                if kc < 7: a(f"s_add_u32 s29, s29, {96*128}")
        write(p + 1)
        if p + 1 < NS - 1:
            a("s_waitcnt lgkmcnt(0)\ns_barrier")
            stats(p + 1)
        else:
            stats(p + 1)
            for e in range(8): a(f"v_permlane32_swap_b32 v{SA+e}, v{QA+e}")
            for e in range(8): a(f"v_add_f32 v{SA+e}, v{SA+e}, v{QA+e}")
            for e in range(4): a(f"v_permlane16_swap_b32 v{SA+e}, v{SA+4+e}")
            for e in range(4): a(f"v_add_f32 v{SA+e}, v{SA+e}, v{SA+4+e}")
            a(f"ds_write_b128 v10, v[{SA}:{SA+3}]\ns_waitcnt lgkmcnt(0)\ns_barrier")
        if p == NS - R + 3:
            V.wait("cs")
            a("""v_add_f32 v16, v16, v17
v_add_f32 v18, v18, v19
v_add_f32 v20, v20, v21
v_add_f32 v22, v22, v23
v_add_f32 v16, v16, v18
v_add_f32 v20, v20, v22
v_add_f32 v16, v16, v20
v_cvt_pk_bf16_f32 v17, v16, v16
v_lshlrev_b32 v17, 16, v17
v_sub_f32 v16, v16, v17
v_cvt_pk_bf16_f32 v18, v16, v16
v_lshlrev_b32 v18, 16, v18
v_sub_f32 v16, v16, v18
v_mov_b32 v22, 0
v_mov_b32 v23, 0
v_cvt_pk_bf16_f32 v20, v17, v18
v_cvt_pk_bf16_f32 v21, v16, v22
v_mov_b32 v24, 0
v_mov_b32 v25, 0
v_mov_b32 v26, 0
v_mov_b32 v27, 0
ds_write_b128 v9, v[20:23]
ds_write_b128 v9, v[24:27] offset:512""")
    a(f"v_lshlrev_b32 v12, 2, v11\nv_add_u32 v12, {LP}, v12")
    for w in range(4): a(f"ds_read2st64_b32 v[{16+2*w}:{17+2*w}], v12 offset0:{4*w} offset1:{4*w+2}")
    a(f"""v_lshlrev_b32 v13, 4, v11
v_add_u32 v13, {LT1}, v13
v_lshlrev_b32 v14, 3, v11
v_add_u32 v14, {LT2}, v14
s_waitcnt lgkmcnt(0)
v_add_f32 v16, v16, v18
v_add_f32 v17, v17, v19
v_add_f32 v20, v20, v22
v_add_f32 v21, v21, v23
v_add_f32 v16, v16, v20
v_add_f32 v17, v17, v21""")
    ln_finalize(a, 16, 17, 18)
    a(f"""v_rcp_f32 v18, v17
v_mul_f32 v19, v17, v17
v_cvt_pk_bf16_f32 v20, -v16, -v16
v_mul_f32 v18, {NLOG2E}, v18
v_mov_b32 v21, v20
v_mov_b32 v22, v20
v_mov_b32 v23, v20
ds_write_b64 v14, v[18:19]
ds_write_b128 v13, v[20:23]
s_waitcnt lgkmcnt(0)
s_barrier""")
    stamp(a, 2, 3)
    a(f"s_branch {end}")

def emit_consumer(a, end):
    ACC = 32; FS = [128, 148]
    VW0, VW1, VH = 2, 3, 4
    a(f"""s_and_b32 s23, s20, 1
s_lshr_b32 s24, s20, 1
s_mul_i32 s25, s23, 3072
v_lshl_add_u32 v{VW0}, v1, 4, s25
v_add_u32 v{VW1}, {5*WS_SLOT}, v{VW0}
v_bfe_u32 v6, v1, 2, 2
v_lshrrev_b32 v7, 5, v1
v_lshl_add_u32 v8, v7, 3, v6
v_lshlrev_b32 v8, 8, v8
v_bfe_u32 v9, v1, 4, 1
v_lshlrev_b32 v9, 5, v9
v_and_b32 v10, 3, v1
v_lshl_add_u32 v9, v10, 3, v9
v_add_u32 v8, v8, v9
v_add_u32 v8, {LH}, v8
s_lshl_b32 s25, s24, 1
v_xor_b32 v9, s25, v6
v_lshl_add_u32 v{VH}, v9, 6, v8
v_xor_b32 v9, 1, v9
v_lshl_add_u32 v{VH+1}, v9, 6, v8
v_and_b32 v10, 31, v1
s_lshl_b32 s25, s24, 6
v_add_u32 v10, s25, v10
v_lshlrev_b32 v11, 4, v10
v_add_u32 v11, {LT1}, v11
v_lshlrev_b32 v12, 3, v10
v_add_u32 v12, {LT2}, v12
s_mul_i32 s25, s23, 3072
v_lshl_add_u32 v13, v1, 4, s25
v_add_u32 v13, {LC}, v13
v_bfe_u32 v14, v1, 4, 1
v_mul_u32_u24 v14, 49152, v14
v_lshl_add_u32 v14, v7, 8, v14
v_and_b32 v15, 15, v1
v_lshl_add_u32 v14, v15, 4, v14
s_lshl_b32 s25, s21, 3
s_lshl_b32 s26, s24, 2
s_add_u32 s25, s25, s26
s_mul_i32 s25, s25, 49152
s_mul_i32 s26, s22, 6
s_mul_i32 s27, s23, 3
s_add_u32 s26, s26, s27
s_lshl_b32 s26, s26, 9
s_add_u32 s25, s25, s26
s_add_u32 s25, s25, {WS_HF}
s_add_u32 s26, s25, {2*49152}
s_waitcnt lgkmcnt(0)""")
    a.srd(8, 4, WS_SIZE)
    S = Sched(a, 5)
    def loads(k):
        s, ks = k >> 1, k & 1; slot = s % R; f = FS[k & 1]; out = []
        vb, base = (VW0, slot*WS_SLOT) if slot < 5 else (VW1, (slot-5)*WS_SLOT)
        def A(ti): out.append((f"ds_read_b128 v[{f+4*ti}:{f+4*ti+3}], v{vb} offset:{base + ks*6144 + ti*1024}", ("A", k, ti)))
        def B(tt):
            o = (s & 1)*8192 + ks*4096; r = f + 12 + 4*tt
            out.append((f"ds_read_b64_tr_b16 v[{r}:{r+1}], v{VH+tt} offset:{o}", None))
            out.append((f"ds_read_b64_tr_b16 v[{r+2}:{r+3}], v{VH+tt} offset:{o+1024}", ("B", k, tt)))
        A(0); B(0); B(1); A(1); A(2)
        return out
    def mm(k, first=False):
        f = FS[k & 1]
        for ti in range(3):
            for tt in range(2):
                c = ACC + 16*(2*ti + tt)
                S.main(f"v_mfma_f32_32x32x16_bf16 v[{c}:{c+15}], v[{f+4*ti}:{f+4*ti+3}], v[{f+12+4*tt}:{f+12+4*tt+3}], {'0' if first else f'v[{c}:{c+15}]'}",
                       needs=[("A", k, ti), ("B", k, tt)])
    a("s_barrier")
    stamp(a, 2, 1)
    for t, tag in loads(0): S.ds(t, tag)
    for k in range(2*NS):
        if k + 1 < 2*NS:
            for t, tag in loads(k + 1): S.add(t, 2, tag, ds=True, hi=True)
        if k == 2*NS - 1:
            f = FS[0]
            for t, tag in ([(f"ds_read_b128 v[{f}:{f+3}], v13", ("A", 40, 0)), (f"ds_read_b128 v[{f+12}:{f+15}], v11", ("B", 40, 0)),
                            (f"ds_read_b128 v[{f+16}:{f+19}], v11 offset:512", ("B", 40, 1)),
                            (f"ds_read_b128 v[{f+4}:{f+7}], v13 offset:1024", ("A", 40, 1)), (f"ds_read_b128 v[{f+8}:{f+11}], v13 offset:2048", ("A", 40, 2)),
                            (f"ds_read_b64 v[16:17], v12", "c0"), (f"ds_read_b64 v[18:19], v12 offset:256", "c1")]):
                S.add(t, 2, tag, ds=True, hi=True)
        mm(k, k == 0)
        if (k & 1) == 0:
            S.flush(); a("s_waitcnt lgkmcnt(0)"); S.done = S.issued
            a("s_barrier")
    mm(40)
    stamp(a, 2, 2)
    S.flush(); S.wait("c0", "c1")
    for tt in range(2):
        c1, c2 = 16 + 2*tt, 17 + 2*tt
        for ti in range(3):
            c = ACC + 16*(2*ti + tt); o = 128 + 4*((2*ti + tt) % 4); T = 168
            st = []
            for r in range(8):
                t = T + 2*r
                st.append([f"v_mul_f32 v{t}, v{c+r}, v{c1}", f"v_exp_f32 v{t}, v{t}", f"v_mul_f32 v{t+1}, v{c+r}, v{c+8+r}",
                           f"v_fma_f32 v{t}, v{t}, v{c2}, v{c2}", f"v_rcp_f32 v{t}, v{t}", f"v_mul_f32 v{t+1}, v{t+1}, v{t}"])
            ls = []
            for g in (0, 4):
                ls += interleave(*st[g:g+4])
                ls += [f"v_cvt_pk_bf16_f32 v{o+g//2}, v{T+2*g+1}, v{T+2*g+3}", f"v_cvt_pk_bf16_f32 v{o+g//2+1}, v{T+2*g+5}, v{T+2*g+7}"]
            for l in ls: a(l)
            a(f"buffer_store_dwordx4 v[{o}:{o+3}], v14, s[8:11], s{25+tt} offen offset:{512*ti} sc1")
    stamp(a, 2, 3)
    a(f"s_branch {end}")

def emit_l3(a):
    name = "gemm1_kernel"
    Ctx.swave = 20; Ctx.vtmp = (186, 187)
    a.begin_kernel(name, 256, 512, LDS3)
    end = a.label("l3_end"); hl = a.label("l3_help")
    a(f"""s_cmp_ge_u32 s2, 256
s_cbranch_scc1 {end}
s_load_dwordx2 s[4:5], s[0:1], 104
v_lshrrev_b32 v2, 6, v0
v_and_b32 v1, 63, v0
s_and_b32 s24, s2, 7
s_lshr_b32 s25, s2, 3
v_readfirstlane_b32 s20, v2
s_and_b32 s21, s24, 1
s_lshl_b32 s21, s21, 3
s_and_b32 s26, s25, 7
s_add_u32 s21, s21, s26
s_lshr_b32 s22, s24, 1
s_lshl_b32 s22, s22, 2
s_lshr_b32 s26, s25, 3
s_add_u32 s22, s22, s26""")
    if Ctx.diag: a("s_waitcnt lgkmcnt(0)")
    stamp(a, 2, 0)
    a(f"s_cmp_ge_u32 s20, 4\ns_cbranch_scc1 {hl}")
    emit_consumer(a, end)
    a(f"{hl}:"); emit_helper(a, end)
    a(f"{end}:\ns_endpgm")
    a.end_kernel(name, 188 if Ctx.diag else 184)
```

```python
from gen_common import *
from sched import Sched
from gen_l1 import interleave
from gen_l3 import Vm

R2 = 6
NS2 = 12
SLOT2 = 20480
LR = R2 * SLOT2
LDS4 = LR + 12288
DH = 5

def emit_helper(a, end):
    a(f"""s_sub_u32 s23, s20, 4
v_lshlrev_b32 v2, 4, v1
v_lshrrev_b32 v3, 3, v1
v_lshlrev_b32 v3, 12, v3
v_and_b32 v4, 7, v1
v_lshl_add_u32 v3, v4, 4, v3
s_mul_i32 s26, s23, 5120
s_mul_i32 s25, s22, {48*5120}
s_add_u32 s25, s25, s26
s_add_u32 s25, s25, {WS_W2}
s_add_u32 s29, s25, 4096
s_mul_i32 s27, s22, 80
s_mul_i32 s28, s23, 24
s_add_u32 s27, s27, s28
s_lshl_b32 s27, s27, 12
s_lshl_b32 s28, s21, 7
s_add_u32 s27, s27, s28
s_add_u32 s27, s27, {WS_H}
s_mul_i32 s30, s23, 3072
s_waitcnt lgkmcnt(0)""")
    a.srd(8, 4, WS_SIZE)
    V = Vm(a)
    def issue(t):
        slot = t % R2
        a(f"s_add_u32 m0, s26, {slot*SLOT2}\ns_nop 0")
        for j in range(4): V.op(f"buffer_load_dwordx4 v2, s[8:11], s25 offen offset:{1024*j} lds")
        a(f"s_add_u32 m0, m0, 4096\ns_nop 0")
        V.op(f"buffer_load_dwordx4 v2, s[8:11], s29 offen lds", t)
        if t < NS2 - 1: a(f"s_add_u32 s25, s25, {SLOT2}\ns_add_u32 s29, s29, {SLOT2}")
    for t in range(R2 - 1):
        issue(t)
        if t == 1:
            for j in range(3):
                a(f"s_add_u32 m0, s30, {LR + 1024*j}\ns_nop 0")
                V.op("buffer_load_dwordx4 v3, s[8:11], s27 offen lds")
                a(f"s_add_u32 s27, s27, {8*4096}")
    V.wait(0)
    a("s_barrier")
    stamp(a, 3, 1)
    for p in range(NS2 - 1):
        if p - 1 + R2 < NS2: issue(p - 1 + R2)
        V.wait(p + 1)
        a("s_barrier")
    stamp(a, 3, 3)
    a(f"s_branch {end}")

def emit_consumer(a, end):
    ACC = 16; FA = [40, 60]; HB = 80
    a(f"""s_load_dwordx2 s[6:7], s[0:1], 88
v_lshlrev_b32 v2, 4, v1
v_add_u32 v3, {3*SLOT2}, v2
s_lshl_b32 s25, s21, 2
s_add_u32 s25, s25, s20
s_mul_i32 s26, s25, 49152
s_add_u32 s26, s26, {WS_HF}
v_lshrrev_b32 v6, 4, v1
v_bfe_u32 v7, v1, 2, 2
v_lshl_add_u32 v7, v6, 2, v7
v_lshlrev_b32 v7, 7, v7
v_and_b32 v8, 3, v1
v_lshl_add_u32 v7, v8, 3, v7
s_lshl_b32 s27, s20, 5
s_add_u32 s27, s27, {LR}
v_add_u32 v7, s27, v7
v_and_b32 v8, 15, v1
v_mul_u32_u24 v8, 1280, v8
s_mul_i32 s27, s25, {16*1280}
s_mul_i32 s28, s22, 160
s_add_u32 s27, s27, s28
v_lshl_add_u32 v9, v6, 3, v8
v_and_b32 v10, 1, v6
v_lshl_add_u32 v8, v10, 5, v8
v_lshrrev_b32 v10, 1, v6
v_lshl_add_u32 v8, v10, 4, v8
s_waitcnt lgkmcnt(0)""")
    a.srd(8, 4, WS_SIZE)
    a.srd(12, 6, L*D*2)
    V = Vm(a)
    def hload(s):
        r = HB + 16*(s % DH)
        for q in range(4): V.op(f"buffer_load_dwordx4 v[{r+4*q}:{r+4*q+3}], v2, s[8:11], s26 offen offset:{1024*q}", ("H", 4*s + q))
        if s < NS2 - 1: a("s_add_u32 s26, s26, 4096")
    for s in range(DH): hload(s)
    S = Sched(a, 2)
    def loads(k):
        s, ks = k >> 2, k & 3; slot = s % R2; f = FA[k & 1]
        vb, base = (2, slot*SLOT2) if slot < 3 else (3, (slot-3)*SLOT2)
        return [(f"ds_read_b128 v[{f+4*j}:{f+4*j+3}], v{vb} offset:{base + ks*5120 + j*1024}", ("A", k, j)) for j in range(5)]
    a("s_barrier")
    stamp(a, 3, 1)
    for t, tag in loads(0): S.ds(t, tag)
    NK = 4*NS2
    for k in range(NK):
        if k + 1 < NK:
            for t, tag in loads(k + 1): S.add(t, 2, tag, ds=True, hi=True)
        else:
            for j in range(5): S.add(f"ds_read_b64_tr_b16 v[{60-20*((k)&1)+2*j if False else FA[0]+2*j}:{FA[0]+2*j+1}], v7 offset:{2048*j}", 2, ("r", j), ds=True, hi=True)
        V.wait(("H", k))
        hb = HB + 16*((k >> 2) % DH) + 4*(k & 3); f = FA[k & 1]
        for j in range(5):
            c = ACC + 4*j
            S.main(f"v_mfma_f32_16x16x32_bf16 v[{c}:{c+3}], v[{f+4*j}:{f+4*j+3}], v[{hb}:{hb+3}], {'0' if k == 0 else f'v[{c}:{c+3}]'}", needs=[("A", k, j)])
        if (k & 3) == 3 and (k >> 2) + DH < NS2: hload((k >> 2) + DH)
        if (k & 3) == 2 and (k >> 2) < NS2 - 1:
            S.flush(); a("s_waitcnt lgkmcnt(0)"); S.done = S.issued
            a("s_barrier")
    stamp(a, 3, 2)
    S.flush(); S.wait(("r", 4))
    odd = a.label("l4_odd")
    def fin(j, o):
        c = ACC + 4*j; h = FA[0] + 2*j; t = 60 + 4*(j % 4)
        return [f"v_cvt_pk_bf16_f32 v{o}, v{c}, v{c+1}", f"v_cvt_pk_bf16_f32 v{o+1}, v{c+2}, v{c+3}",
                f"v_lshlrev_b32 v{t}, 16, v{h}", f"v_and_b32 v{t+1}, 0xffff0000, v{h}", f"v_lshlrev_b32 v{t+2}, 16, v{h+1}", f"v_and_b32 v{t+3}, 0xffff0000, v{h+1}",
                f"v_lshlrev_b32 v{c}, 16, v{o}", f"v_and_b32 v{c+1}, 0xffff0000, v{o}", f"v_lshlrev_b32 v{c+2}, 16, v{o+1}", f"v_and_b32 v{c+3}, 0xffff0000, v{o+1}"] + \
               [f"v_add_f32 v{c+i}, v{c+i}, v{t+i}" for i in range(4)] + \
               [f"v_cvt_pk_bf16_f32 v{o}, v{c}, v{c+1}", f"v_cvt_pk_bf16_f32 v{o+1}, v{c+2}, v{c+3}"]
    def variant(single, pairs):
        for (j0, j1), q in zip(pairs, (80, 84)):
            for l in interleave(fin(j0, q), fin(j1, q + 2)): a(l)
            a(f"v_permlane16_swap_b32 v{q}, v{q+2}\nv_permlane16_swap_b32 v{q+1}, v{q+3}")
            a(f"buffer_store_dwordx4 v[{q}:{q+3}], v8, s[12:15], s27 offen offset:{32*j0} sc1")
        for l in fin(single, 88): a(l)
        a(f"buffer_store_dwordx2 v[88:89], v9, s[12:15], s27 offen offset:{32*single} sc1")
        stamp(a, 3, 3)
        a(f"s_branch {end}")
    a(f"s_bitcmp1_b32 s22, 0\ns_cbranch_scc1 {odd}")
    variant(4, ((0, 1), (2, 3)))
    a(f"{odd}:")
    variant(0, ((1, 2), (3, 4)))

def emit_l4(a):
    name = "gemm2_kernel"
    Ctx.swave = 20; Ctx.vtmp = (160, 161)
    a.begin_kernel(name, 256, 512, LDS4)
    end = a.label("l4_end"); hl = a.label("l4_help")
    a(f"""s_cmp_ge_u32 s2, 256
s_cbranch_scc1 {end}
s_load_dwordx2 s[4:5], s[0:1], 104
v_lshrrev_b32 v2, 6, v0
v_and_b32 v1, 63, v0
s_and_b32 s24, s2, 7
s_lshr_b32 s25, s2, 3
v_readfirstlane_b32 s20, v2
s_and_b32 s21, s24, 3
s_lshl_b32 s21, s21, 3
s_and_b32 s26, s25, 7
s_add_u32 s21, s21, s26
s_lshr_b32 s22, s24, 2
s_lshl_b32 s22, s22, 2
s_lshr_b32 s26, s25, 3
s_add_u32 s22, s22, s26""")
    if Ctx.diag: a("s_waitcnt lgkmcnt(0)")
    stamp(a, 3, 0)
    a(f"s_cmp_ge_u32 s20, 4\ns_cbranch_scc1 {hl}")
    emit_consumer(a, end)
    a(f"{hl}:"); emit_helper(a, end)
    a(f"{end}:\ns_endpgm")
    a.end_kernel(name, 162 if Ctx.diag else 160)
```

```python
class Sched:
    def __init__(self, a, budget):
        self.a = a; self.budget = budget
        self.issued = 0; self.done = 0; self.tags = {}
        self.fill = []; self.hi = []
        self.n = 0
    def ds(self, text, tag=None):
        self.a(text); self.issued += 1
        if tag is not None: self.tags[tag] = self.issued
    def wait(self, *tags):
        k = max([self.tags[t] for t in tags if t in self.tags] + [0])
        if k > self.done:
            n = min(15, self.issued - k)
            self.a(f"s_waitcnt lgkmcnt({n})")
            self.done = self.issued - n
    def add(self, text, cost=1, tag=None, needs=(), after=-1, ds=False, hi=False):
        (self.hi if hi else self.fill).append(dict(text=text, cost=cost, tag=tag, needs=needs, after=after, ds=ds))
    def _emit(self, f):
        if f["needs"]: self.wait(*f["needs"])
        if f["ds"]: self.ds(f["text"], f["tag"])
        else: self.a(f["text"])
    def gap(self):
        b = self.budget
        while self.hi and self.hi[0]["after"] <= self.n and self.hi[0]["cost"] <= b:
            f = self.hi.pop(0); b -= f["cost"]; self._emit(f)
        while self.fill and self.fill[0]["after"] <= self.n and self.fill[0]["cost"] <= b:
            f = self.fill.pop(0); b -= f["cost"]; self._emit(f)
    def main(self, text, needs=()):
        pend = [t for t in needs if t not in self.tags]
        while pend:
            f = (self.hi if self.hi else self.fill).pop(0); self._emit(f)
            pend = [t for t in needs if t not in self.tags]
        self.wait(*needs)
        self.a(text); self.n += 1
        self.gap()
    def flush(self):
        while self.hi: self._emit(self.hi.pop(0))
        while self.fill: self._emit(self.fill.pop(0))
```

```python
import sys
from gen_common import *
import gen_l1
def build(diag=False, upto=4):
    Ctx.diag = diag
    a = Asm()
    gen_l1.emit_l1(a)
    if upto >= 2:
        import gen_l2; gen_l2.emit_l2(a)
    if upto >= 3:
        import gen_l3; gen_l3.emit_l3(a)
    if upto >= 4:
        import gen_l4; gen_l4.emit_l4(a)
    ref = open("sequential_preLN__ssm_conv_s4d__swiglu_ffn__prompt.s.ref").read().split("\n")
    hdr = "\n".join(l for l in ref[:16] if l.startswith(";") and "@launch" not in l and "Override" not in l and "grid=ceil" not in l)
    t = a.text(hdr)
    return t, a.nops
if __name__ == "__main__":
    upto = int(sys.argv[2]) if len(sys.argv) > 2 else 4
    diag = len(sys.argv) > 3 and sys.argv[3] == "diag"
    t, n = build(diag, upto)
    open(sys.argv[1], "w").write(t)
    print("written", sys.argv[1], len(t), "bytes; wait states inserted:", n)
```

```python
import re

TRANS = ("v_exp_f32", "v_log_f32", "v_rcp_f32", "v_rsq_f32", "v_sqrt_f32", "v_sin_f32", "v_cos_f32", "v_rcp_iflag_f32")
RMW = ("v_fmac_", "v_dot2c_", "v_pk_fmac", "v_mac_", "v_writelane")

def regs_of(op):
    op = op.strip().lstrip("-")
    op = re.sub(r"^abs\((.*)\)$", r"\1", op).strip("|")
    m = re.fullmatch(r"([vsa])\[(\d+):(\d+)\]", op)
    if m: return {(m.group(1), i) for i in range(int(m.group(2)), int(m.group(3)) + 1)}
    m = re.fullmatch(r"([vsa])(\d+)", op)
    if m: return {(m.group(1), int(m.group(2)))}
    if op == "vcc": return {("s", "vcc_lo"), ("s", "vcc_hi")}
    if op in ("vcc_lo", "vcc_hi"): return {("s", op)}
    if op == "exec": return {("s", "exec")}
    if op == "m0": return {("s", "m0")}
    return set()

class Ins:
    def __init__(self, text):
        self.text = text
        t = text.split(";")[0].strip()
        self.label = t[:-1] if t.endswith(":") else None
        self.directive = t.startswith(".") and not self.label
        self.wr = set(); self.rd = set(); self.mn = ""; self.ops = []
        self.sc = set(); self.data = set()
        if self.label or self.directive or not t: return
        parts = t.split(None, 1)
        self.mn = mn = parts[0]
        rest = parts[1] if len(parts) > 1 else ""
        toks = [x.strip() for x in re.split(r",(?![^\[]*\])", rest)] if rest else []
        mods = ""
        if toks:
            last = toks[-1].split(None, 1)
            if len(last) > 1 and not last[0].endswith("("):
                toks[-1] = last[0]; mods = last[1]
        self.ops = toks; self.mods = mods
        R = [regs_of(x) for x in toks]
        U = lambda l: set().union(*l) if l else set()
        self.mfma = mn.startswith("v_mfma")
        self.valu = mn.startswith("v_") and not self.mfma
        self.vmem = mn.startswith(("buffer_", "global_", "flat_"))
        self.ds = mn.startswith("ds_")
        self.salu = mn.startswith("s_")
        self.dpp = any(k in mods for k in ("quad_perm", "row_shr", "row_shl", "row_ror", "row_mirror", "row_half_mirror", "row_bcast", "wave_", "row_newbcast"))
        self.lds_dma = self.vmem and re.search(r"\blds\b", mods) is not None
        if self.mfma:
            self.wr = R[0]; self.rd = U(R[1:]); self.ab = R[1] | R[2]; self.sc = R[3]
            self.passes = 8 if "32x32x16" in mn else 4 if "16x16x32" in mn else 2 if "4x4x4" in mn else None
            assert self.passes, mn
        elif self.valu:
            if mn.startswith("v_cmp"):
                self.wr = R[0]; self.rd = U(R[1:])
            elif "permlane" in mn and "swap" in mn:
                self.wr = R[0] | R[1]; self.rd = R[0] | R[1]
            elif mn.startswith(("v_add_co", "v_sub_co", "v_addc_co", "v_subb_co")):
                self.wr = R[0] | R[1]; self.rd = U(R[2:])
            elif mn == "v_nop":
                pass
            else:
                self.wr = R[0]; self.rd = U(R[1:])
                if mn.startswith(RMW) or self.dpp: self.rd |= R[0]
                if mn.startswith("v_cndmask") and len(toks) == 3: self.rd |= regs_of("vcc")
        elif self.ds:
            if mn.startswith("ds_read") or mn.startswith(("ds_bpermute", "ds_permute", "ds_swizzle")):
                self.wr = R[0]; self.rd = U(R[1:])
            else:
                self.rd = U(R)
            if "addtid" in mn: self.rd |= regs_of("m0")
        elif self.vmem:
            if self.lds_dma:
                self.rd = U(R) | regs_of("m0")
            elif "load" in mn:
                self.wr = R[0]; self.rd = U(R[1:])
            elif "atomic" in mn:
                self.rd = U(R)
                if re.search(r"\bsc0\b", mods): self.wr = R[0]
            else:
                self.rd = U(R)
                self.data = R[0] if mn.startswith("buffer_") else R[1]
        elif self.salu:
            if mn.startswith(("s_cmp", "s_cbranch", "s_branch", "s_waitcnt", "s_nop", "s_barrier", "s_endpgm", "s_sleep", "s_setprio", "s_bitcmp")):
                self.rd = U(R)
            else:
                self.wr = R[0] if R else set(); self.rd = U(R[1:])
                if "saveexec" in mn: self.wr |= regs_of("exec")
        self.states = int(toks[0]) + 1 if mn == "s_nop" else 1

def need(p, c):
    n = 0
    V = lambda s: {r for r in s if r[0] in "va"}
    S = lambda s: {r for r in s if r[0] == "s"}
    if p.mfma:
        raw = {2: 5, 4: 8, 8: 12}[p.passes]
        if c.mfma:
            if p.wr & c.ab: n = max(n, raw)
            if p.wr & c.sc:
                n = max(n, ({2: 2, 4: 0, 8: 0} if (p.wr == c.sc and p.passes == c.passes) else {2: 4, 4: 6, 8: 10})[p.passes])
            elif p.wr & c.wr: n = max(n, raw)
        elif c.valu or c.vmem or c.ds:
            if p.wr & (c.rd | c.wr): n = max(n, raw)
            if c.valu and (p.sc & c.wr): n = max(n, {2: 1, 4: 3, 8: 7}[p.passes])
    if p.valu:
        wv, ws = V(p.wr), S(p.wr)
        if c.mfma and wv & c.rd: n = max(n, 2)
        if p.mn.startswith(TRANS) and c.valu and not c.mn.startswith(TRANS) and wv & c.rd: n = max(n, 1)
        if p.mn.startswith("v_dot2") and (c.valu or c.vmem or c.ds) and wv & (c.rd | c.wr):
            same = c.mn == p.mn and not (wv & set().union(*[regs_of(x) for x in c.ops[1:]]))
            if not same: n = max(n, 3)
        if c.valu and ws & c.rd:
            n = max(n, 4 if c.mn.startswith(("v_readlane", "v_writelane")) else 2)
        if c.vmem and ws & c.rd: n = max(n, 5)
        if c.salu and ws & c.rd: n = max(n, 1)
        if c.valu and c.mn.startswith(("v_readlane", "v_readfirstlane")) and wv & c.rd: n = max(n, 1)
        if c.valu and ("permlane" in c.mn or c.dpp) and wv & c.rd: n = max(n, 2)
    if p.salu and ("s", "m0") in p.wr and (c.lds_dma if c.vmem else (c.ds and "addtid" in c.mn)): n = max(n, 1)
    if p.vmem and len(p.data) >= 3 and (p.data & c.wr) and (c.valu or c.mfma): n = max(n, 2)
    return n

def fix_hazards(lines, maxdist=14):
    ins = [Ins(l) for l in lines]
    labels = {x.label: i for i, x in enumerate(ins) if x.label}
    preds = {}
    for i, x in enumerate(ins):
        if x.mn.startswith(("s_cbranch", "s_branch")):
            preds.setdefault(labels[x.ops[0]], []).append(i)
    pad = [0] * len(ins)
    total = 0
    for i, c in enumerate(ins):
        if not c.mn or c.mn in ("s_nop",): continue
        worst = 0
        stack = [(i - 1, 0)]; seen = set()
        while stack:
            j, d = stack.pop()
            while j >= 0 and d < maxdist:
                if (j, d) in seen: break
                seen.add((j, d))
                p = ins[j]
                if p.label:
                    for b in preds.get(j, []): stack.append((b, d))
                    j -= 1; continue
                if p.directive or not p.mn:
                    j -= 1; continue
                if p.mn in ("s_branch", "s_endpgm") and not (j + 1 <= i and False):
                    if not any(j == b for b in []):
                        pass
                q = need(p, c) - d
                if q > worst: worst = q
                d += p.states + pad[j]
                j -= 1
                if j >= 0 and ins[j].mn in ("s_branch", "s_endpgm"): break
        if worst > 0:
            pad[i] = worst; total += worst
    out = []
    for i, x in enumerate(ins):
        if pad[i]: out.append(f"    s_nop {pad[i]-1}")
        out.append(x.text)
    return out, total

def verify(lines):
    ins = [Ins(l) for l in lines]
    labels = {x.label: i for i, x in enumerate(ins) if x.label}
    problems = []
    entries = [i for i, x in enumerate(ins) if x.label and x.label.endswith("_kernel")]
    for e in entries:
        seen = set(); stack = [(e, frozenset())]
        while stack:
            i, pend = stack.pop()
            while i < len(ins):
                if (i, pend) in seen: break
                seen.add((i, pend))
                x = ins[i]
                if x.mn:
                    if x.mn.startswith(("global_", "flat_", "scratch_")): problems.append(f"unchecked access: {x.text.strip()}")
                    if pend & (x.rd | x.wr) and not x.mn.startswith("s_waitcnt"):
                        problems.append(f"pending scalar load used: {x.text.strip()}")
                    if x.mn.startswith(("s_load", "s_memtime", "s_memrealtime")): pend = pend | frozenset(x.wr)
                    if x.mn == "s_waitcnt" and "lgkmcnt(0)" in x.text: pend = frozenset()
                    if x.mn == "s_endpgm": break
                    if x.mn == "s_branch": i = labels[x.ops[0]]; continue
                    if x.mn.startswith("s_cbranch"): stack.append((labels[x.ops[0]], pend))
                i += 1
    return sorted(set(problems))

def barrier_counts(lines, entry):
    ins = [Ins(l) for l in lines]
    labels = {x.label: i for i, x in enumerate(ins) if x.label}
    import functools, sys
    sys.setrecursionlimit(100000)
    memo = {}
    def go(i):
        n = 0; start = i
        if i in memo: return memo[i]
        while True:
            x = ins[i]
            if x.mn == "s_barrier": n += 1
            if x.mn == "s_endpgm": r = {n}; break
            if x.mn == "s_branch": r = {n + k for k in go(labels[x.ops[0]])}; break
            if x.mn.startswith("s_cbranch") and labels[x.ops[0]] > i:
                r = {n + k for k in go(labels[x.ops[0]]) | go(i + 1)}; break
            i += 1
        memo[start] = r
        return r
    return go(labels[entry])

class Asm:
    def __init__(self):
        self.lines = []; self.launch = []; self.kds = []; self.uid = 0
    def __call__(self, s=""):
        for l in s.split("\n"):
            l = l.strip()
            if l: self.lines.append(l if l.endswith(":") else "    " + l)
    def label(self, base):
        self.uid += 1
        return f"L_{base}_{self.uid}"
    def begin_kernel(self, name, grid, block, lds):
        self.relaunch(name, grid, block, lds)
        self.cur = name
        self.lines += [".text", f".globl {name}", ".p2align 8", f".type {name},@function", f"{name}:"]
    def relaunch(self, name, grid, block, lds):
        self.launch.append(f"; @launch kernel={name} grid=({grid},1,1) block=({block},1,1) lds={lds}")
    def end_kernel(self, name, vgpr, agpr=0, sgpr=96):
        acc = (vgpr + 3) // 4 * 4
        nfv = acc + agpr if agpr else vgpr
        self.kds.append(f""".amdhsa_kernel {name}
  .amdhsa_next_free_vgpr {nfv}
  .amdhsa_next_free_sgpr {sgpr}
  .amdhsa_accum_offset {acc}
  .amdhsa_group_segment_fixed_size 0
  .amdhsa_kernarg_size 112
  .amdhsa_user_sgpr_count 2
  .amdhsa_user_sgpr_kernarg_segment_ptr 1
  .amdhsa_system_sgpr_workgroup_id_x 1
  .amdhsa_float_denorm_mode_32 3
  .amdhsa_float_denorm_mode_16_64 3
.end_amdhsa_kernel""")
    def text(self, header="", hazards=True):
        lines = self.lines
        if hazards:
            lines, self.nops = fix_hazards(lines)
        self.final = lines
        out = []
        if header: out.append(header.rstrip())
        out += self.launch
        out.append('.amdgcn_target "amdgcn-amd-amdhsa--gfx950"')
        out += lines
        out.append('.section .rodata,"a"')
        for kd in self.kds:
            out.append(".p2align 6"); out.append(kd)
        return "\n".join(out) + "\n"
    def srd(self, s, base, nbytes, off=0):
        if off:
            self(f"s_add_u32 s{s}, s{base}, {off}\ns_addc_u32 s{s+1}, s{base+1}, 0\ns_and_b32 s{s+1}, s{s+1}, 0xffff")
        else:
            self(f"s_mov_b32 s{s}, s{base}\ns_and_b32 s{s+1}, s{base+1}, 0xffff")
        self(f"s_mov_b32 s{s+2}, {nbytes}\ns_mov_b32 s{s+3}, 0x20000")
```

```python
import os
from asmlib import Asm
L, D, NM, F = 2048, 640, 192, 1536
WB = int(os.environ.get('WSBASE', '0'), 0)
WS_U  = WB + 0x000000
WS_X  = WB + 0x280000
WS_K  = WB + 0x500000
WS_H  = WB + 0xA80000
WS_W1 = WB + 0xD00000
WS_W2 = WB + 0x1100000
WS_CS = WB + 0x1300000
WS_ST = WB + 0x1340000
WS_F1 = WS_ST + 0x40000
WS_F2 = WS_F1 + 0x4000
NCLEAR = 288
WS_HF = WB + 0x1400000
WS_DIAG = WB + 0x1A00000
WS_SIZE = 268435456
KIMG = 8448
LOG2E = "0x3fb8aa3b"; NLOG2E = "0xbfb8aa3b"
SPIN = 1 << 20

class Ctx:
    diag = False
    swave = 20
    vtmp = (254, 255)

def interleave(*streams):
    out = []
    streams = [list(s) for s in streams]
    while any(streams):
        for s in streams:
            if s: out.append(s.pop(0))
    return out

class Vm:
    def __init__(self, a): self.a = a; self.issued = 0; self.done = 0; self.tags = {}
    def op(self, text, tag=None):
        self.a(text); self.issued += 1
        if tag is not None: self.tags[tag] = self.issued
    def wait(self, tag):
        k = self.tags[tag]
        if k > self.done:
            n = min(63, self.issued - k); self.a(f"s_waitcnt vmcnt({n})"); self.done = self.issued - n
    def drain(self):
        self.a("s_waitcnt vmcnt(0)"); self.done = self.issued

def ln_finalize(a, s, q):
    a(f"""v_mul_f32 v{s}, 0x3acccccd, v{s}
v_mul_f32 v{q}, 0x3acccccd, v{q}
v_fma_f32 v{q}, -v{s}, v{s}, v{q}
v_max_f32 v{q}, 0, v{q}
v_cvt_pk_bf16_f32 v{s}, v{s}, v{q}
v_and_b32 v{q}, 0xffff0000, v{s}
v_lshlrev_b32 v{s}, 16, v{s}
v_add_f32 v{q}, 0x3727c5ac, v{q}
v_cvt_pk_bf16_f32 v{q}, v{q}, v{q}
v_lshlrev_b32 v{q}, 16, v{q}
v_sqrt_f32 v{q}, v{q}
s_nop 0
v_cvt_pk_bf16_f32 v{q}, v{q}, v{q}
v_lshlrev_b32 v{q}, 16, v{q}""")

def code_srd(a, s, entry, label, end):
    a(f"s_add_u32 s{s}, s{entry}, {label}-{a.cur}\ns_addc_u32 s{s+1}, s{entry+1}, 0\ns_and_b32 s{s+1}, s{s+1}, 0xffff\ns_mov_b32 s{s+2}, {end}-{label}\ns_mov_b32 s{s+3}, 0x20000")

def stamp(a, i, group="main"):
    if not Ctx.diag or os.environ.get("DETAIL", "main") != group: return
    a(f"{'s_memtime' if os.environ.get('LCLK') else 's_memrealtime'} s[{60+2*i}:{61+2*i}]")
    if group == "main": a("s_waitcnt lgkmcnt(0)")
def stamp_init(a, n=18):
    if Ctx.diag:
        for i in range(n): a(f"s_mov_b32 s{60+2*i}, 0")
def stamp_flush(a, kidx, n=18, wsreg=4):
    if not Ctx.diag: return
    va, vb = Ctx.vtmp
    a(f"""s_waitcnt lgkmcnt(0)
s_mov_b64 exec, 1
s_lshl_b32 s58, s2, 10
s_lshl_b32 s59, s{Ctx.swave}, 7
s_add_u32 s58, s58, s59
s_add_u32 s58, s58, {WS_DIAG + kidx*0x100000}
v_mov_b32 v{va}, s58""")
    a.srd(52, wsreg, WS_SIZE)
    for i in range(n):
        a(f"v_mov_b32 v{vb}, s{60+2*i}\nbuffer_store_dword v{vb}, v{va}, s[52:55], 0 offen offset:{4*i}")
```

```python
from gen_common import *

def cmul(a, d, x, y, conj=False):
    if not conj:
        return [f"v_pk_mul_f32 v[{d}:{d+1}], v[{x}:{x+1}], v[{y}:{y+1}] op_sel:[0,0] op_sel_hi:[0,1]",
                f"v_pk_fma_f32 v[{d}:{d+1}], v[{x}:{x+1}], v[{y}:{y+1}], v[{d}:{d+1}] op_sel:[1,1,0] op_sel_hi:[1,0,1] neg_lo:[0,1,0]"]
    return [f"v_pk_mul_f32 v[{d}:{d+1}], v[{x}:{x+1}], v[{y}:{y+1}] op_sel:[0,0] op_sel_hi:[0,1] neg_hi:[0,1]",
            f"v_pk_fma_f32 v[{d}:{d+1}], v[{x}:{x+1}], v[{y}:{y+1}], v[{d}:{d+1}] op_sel:[1,1,0] op_sel_hi:[1,0,1]"]

NLN, NF1, NKG = 128, 192, 640
TROW = 272
TAB = 32 * TROW

def emit_kgen(a, end):
    a(f"""s_cmp_eq_u32 s20, 3
s_cbranch_scc1 {end}
s_load_dwordx8 s[8:15], s[0:1], 8
s_load_dwordx2 s[16:17], s[0:1], 40
s_sub_u32 s21, s2, {NLN + NF1}
s_mul_i32 s23, s21, {NM*2}
s_lshl_b32 s24, s20, 7
s_add_u32 s23, s23, s24
v_lshl_add_u32 v9, v1, 1, s23
s_lshl_b32 s23, s21, 1
s_and_b32 s23, s23, 0xfffffffc
s_mul_i32 m0, s20, {TAB}
s_waitcnt lgkmcnt(0)""")
    for i in range(4):
        a.srd(40 + 4*i, 8 + 2*i, D*NM*2)
        a(f"buffer_load_ushort v{2+i}, v9, s[{40+4*i}:{43+4*i}], 0 offen")
    a(f"""s_load_dword s22, s[16:17], s23
v_and_b32 v60, 31, v1
v_mul_u32_u24 v60, {TROW}, v60
v_lshrrev_b32 v61, 5, v1
v_lshl_add_u32 v60, v61, 4, v60
v_add_u32 v60, m0, v60
s_and_b32 s24, s21, 1
s_lshl_b32 s24, s24, 4
s_waitcnt lgkmcnt(0)
s_lshr_b32 s22, s22, s24
s_lshl_b32 s22, s22, 16
v_mov_b32 v6, s22
v_mul_f32 v6, {LOG2E}, v6
v_exp_f32 v6, v6
v_mov_b32 v30, 0x3f80
v_cvt_pk_bf16_f32 v6, v6, v6
v_lshlrev_b32 v6, 16, v6
ds_write_addtid_b32 v30 offset:0
v_add_f32 v31, v6, v6
s_waitcnt vmcnt(3)
v_lshlrev_b32 v2, 16, v2
v_mul_f32 v2, {LOG2E}, v2
v_exp_f32 v2, v2
s_waitcnt vmcnt(2)
v_lshlrev_b32 v3, 16, v3
v_mul_f32 v8, v3, v6
v_cvt_pk_bf16_f32 v2, v2, v2
v_mul_f32 v8, 0.15915494, v8
v_lshlrev_b32 v2, 16, v2
v_mul_f32 v7, v2, v6
v_mul_f32 v7, {NLOG2E}, v7""")
    stamp(a, 1)
    def ev(dst, p, t):
        s = []
        if p == "1.0":
            s += [f"v_exp_f32 v{t}, v7", f"v_fract_f32 v{t+1}, v8"]
        else:
            s += [f"v_mul_f32 v{t}, {p}, v7", f"v_mul_f32 v{t+1}, {p}, v8", f"v_exp_f32 v{t}, v{t}", f"v_fract_f32 v{t+1}, v{t+1}"]
        s += [f"v_cos_f32 v{dst}, v{t+1}", f"v_sin_f32 v{dst+1}, v{t+1}", f"v_mul_f32 v{dst}, v{dst}, v{t}", f"v_mul_f32 v{dst+1}, v{dst+1}, v{t}"]
        return s
    E1, E8, E256, E2, E4, E16 = 10, 12, 14, 16, 18, 20
    for l in interleave(ev(E8, "0x41000000", 32), ev(E1, "1.0", 34), ev(E256, "0x43800000", 36)): a(l)
    for l in cmul(a, E16, E8, E8): a(l)
    for l in cmul(a, E2, E1, E1): a(l)
    a("""s_waitcnt vmcnt(0)
v_lshlrev_b32 v4, 16, v4
v_lshlrev_b32 v5, 16, v5
v_mul_f32 v22, v4, v31
v_mul_f32 v23, -v5, v31""")
    for l in cmul(a, E4, E2, E2): a(l)
    G0 = 22
    def put(src, rows, t=56):
        return [f"v_cvt_pk_bf16_f32 v{t}, v{src}, v{src+1}"] + [f"ds_write_addtid_b32 v{t} offset:{r*TROW}" for r in rows]
    def chain(first, c0, p0, p1, t):
        s = put(first, [c0], t); cur = first
        for c in range(c0 + 2, 32, 2):
            nxt = p0 if cur != p0 else p1
            s += cmul(a, nxt, cur, E16) + put(nxt, [c], t); cur = nxt
        return s
    for l in interleave(chain(E8, 1, 24, 26, 56), chain(E16, 2, 28, 32, 57)): a(l)
    for s in range(8): a(f"ds_read_b128 v[{64+4*s}:{67+4*s}], v60 offset:{32*s}")
    row = lambda r, hh: 8*(r >> 2) + 4*hh + (r & 3)
    sG = put(G0, [row(0, 0)]); cur = G0
    for i in range(1, 9):
        nxt = 24 if cur != 24 else 26
        sG += cmul(a, nxt, cur, E1, True) + put(nxt, [row(i, 0)]); cur = nxt
    sS = []
    H = [None, 28, 32, 34, 36, 38, 40, 42]
    sH = []
    prev = G0
    for k in range(1, 8):
        sH += cmul(a, H[k], prev, E256, True); prev = H[k]
    rows0 = {1: [row(0, 1), row(1, 1)], 2: [row(9, 0)], 3: [row(9, 1)], 4: [row(12, 0)], 5: [row(12, 1)], 6: [row(14, 0)], 7: [row(14, 1)]}
    for l in interleave(sG[:len(sG)//2], sH): a(l)
    s1 = put(H[1], rows0[1], 57); cur = H[1]
    for rows in ([row(2, 1)], [row(3, 1), row(4, 1), row(5, 1)], [row(6, 1)], [row(7, 1), row(8, 1)]):
        nxt = 44 if cur != 44 else 46
        s1 += cmul(a, nxt, cur, E2, True) + put(nxt, rows, 57); cur = nxt
    s2 = []
    for k in (2, 3):
        hh = k & 1
        s2 += put(H[k], rows0[k], 58) + cmul(a, 48, H[k], E4, True) + cmul(a, 50, H[k], E8, True) + put(48, [row(10, hh)], 59) + put(50, [row(11, hh)], 58)
    for l in interleave(sG[len(sG)//2:], s1, s2): a(l)
    s4 = []; s5 = []
    for k in (4, 5, 6, 7):
        hh = k & 1; r = 12 if k < 6 else 14
        t = 52 if hh == 0 else 54
        (s4 if hh == 0 else s5).extend(put(H[k], rows0[k], 56+hh) + cmul(a, t, H[k], E8, True) + put(t, [row(r+1, hh)], 58+hh))
    for l in interleave(s4, s5): a(l)
    stamp(a, 2)
    for s in range(8): a(f"ds_read_b128 v[{16+4*s}:{19+4*s}], v60 offset:{32*s}")
    for s in range(8):
        a(f"s_waitcnt lgkmcnt({7-s})")
        a(f"v_mfma_f32_32x32x16_bf16 v[96:111], v[{16+4*s}:{19+4*s}], v[{64+4*s}:{67+4*s}], {'0' if s == 0 else 'v[96:111]'}")
    a(f"""v_and_b32 v2, 31, v1
v_lshlrev_b32 v2, 5, v2
v_lshl_add_u32 v2, v61, 4, v2
s_mul_i32 s23, s21, {KIMG}
s_add_u32 s23, s23, {WS_K}
v_lshlrev_b32 v3, 2, v1
v_and_b32 v4, 1, v1
v_cmp_eq_u32 vcc, 1, v4""")
    a.srd(12, 4, WS_SIZE)
    own = {0: list(range(0, 9)), 1: [9, 10, 11], 2: [12, 13, 14, 15]}
    labs = [a.label("kg_w") for _ in range(3)]
    a(f"s_cmp_eq_u32 s20, 1\ns_cbranch_scc1 {labs[1]}\ns_cmp_eq_u32 s20, 2\ns_cbranch_scc1 {labs[2]}")
    for p in range(3):
        a(f"{labs[p]}:")
        for r in range(16):
            if r not in own[p]: a(f"ds_write_addtid_b32 v{96+r} offset:{r*256}")
        a("s_waitcnt lgkmcnt(0)\ns_barrier")
        others = [q for q in range(3) if q != p]
        for i, r in enumerate(own[p]):
            for j, q in enumerate(others): a(f"ds_read_b32 v{16+2*i+j}, v3 offset:{q*TAB + r*256}")
        n = len(own[p])
        for i, r in enumerate(own[p]):
            a(f"s_waitcnt lgkmcnt({min(15, 2*(n-1-i))})")
            a(f"v_add_f32 v{16+2*i}, v{16+2*i}, v{17+2*i}\nv_add_f32 v{96+r}, v{96+r}, v{16+2*i}")
        def out(slot, V, base):
            for i in range(1, 9): a(f"v_cvt_pk_bf16_f32 v{base+i-1}, v{V[i]}, v{V[i-1]}")
            for i in range(4): a(f"v_permlane32_swap_b32 v{base+i}, v{base+4+i}")
            a(f"s_add_u32 s24, s23, {2048*slot}")
            a(f"buffer_store_dwordx4 v[{base}:{base+3}], v2, s[12:15], s24 offen offset:256 sc1")
            a(f"buffer_store_dwordx4 v[{base+4}:{base+7}], v2, s[12:15], s24 offen offset:1280 sc1")
        if p == 0:
            a("""v_mov_b32 v6, 0
v_cvt_pk_bf16_f32 v6, v96, v6
v_cmp_eq_u32 vcc, 0, v1
v_sub_u32 v7, 252, v3
v_cndmask_b32 v6, 0, v6, vcc
buffer_store_dword v6, v7, s[12:15], s23 offen sc1""")
            out(0, [96+i for i in range(9)], 40)
        elif p == 1:
            out(1, [105]*3 + [106]*3 + [107]*3, 40)
        else:
            for slot, r in ((2, 12), (3, 14)):
                a(f"v_cndmask_b32 v6, v{96+r}, v{97+r}, vcc")
                out(slot, [96+r]*4 + [6] + [97+r]*4, 40 + 8*(slot-2))
        stamp(a, 3)
        a(f"s_branch {end}")

def emit_ln(a, end):
    a(f"""s_load_dwordx2 s[6:7], s[0:1], 0
v_lshrrev_b32 v2, 2, v1
v_mul_u32_u24 v3, 1280, v2
v_and_b32 v4, 3, v1
v_lshl_add_u32 v3, v4, 4, v3
s_mul_i32 s21, s2, {16*1280}
s_mul_i32 s22, s20, 320
s_add_u32 s21, s21, s22
s_mul_i32 s23, s20, 5120
s_waitcnt lgkmcnt(0)""")
    a.srd(8, 6, L*D*2)
    for i in range(5):
        a(f"s_add_u32 m0, s23, {i*960}\ns_nop 0\nbuffer_load_dwordx4 v3, s[8:11], s21 offen offset:{64*i} lds")
    skip = a.label("noclr")
    code_srd(a, 36, 34, "main_kernel", "main_code_end")
    a.srd(12, 4, WS_SIZE)
    nopf = a.label("nopf")
    a(f"""s_cmp_lt_u32 s2, 16
s_cbranch_scc1 {nopf}
s_cmp_ge_u32 s2, 32
s_cbranch_scc1 {nopf}
v_lshlrev_b32 v5, 7, v0
buffer_load_dword v115, v5, s[36:39], 0 offen
{nopf}:
s_lshl_b32 s24, s2, 2
s_add_u32 s24, s24, s20
s_cmp_ge_u32 s24, {NCLEAR}
s_cbranch_scc1 {skip}
s_lshl_b32 s24, s24, 10
s_add_u32 s24, s24, {WS_ST}
v_lshl_add_u32 v5, v1, 4, s24
v_mov_b32 v16, -1
v_mov_b32 v17, -1
v_mov_b32 v18, -1
v_mov_b32 v19, -1
buffer_store_dwordx4 v[16:19], v5, s[12:15], 0 offen sc1
{skip}:""")
    a(f"""v_lshl_add_u32 v5, v1, 4, s23
v_bfe_u32 v6, v1, 4, 1
v_lshrrev_b32 v7, 5, v1
v_bfe_u32 v8, v1, 2, 2
v_lshl_add_u32 v8, v7, 3, v8
v_lshlrev_b32 v8, 6, v8
v_lshl_add_u32 v8, v6, 5, v8
v_lshl_add_u32 v8, v4, 3, v8
v_add_u32 v8, s23, v8
v_and_b32 v9, 15, v1
v_lshl_add_u32 v9, v6, 4, v9
v_lshlrev_b32 v9, 5, v9
v_lshl_add_u32 v9, v7, 4, v9
s_mul_i32 s24, s2, 20480
s_add_u32 s24, s24, s23
s_add_u32 s26, s24, {WS_U}
s_add_u32 s28, s24, {WS_X}
v_add_u32 v10, 4096, v9
v_mov_b32 v11, 0
v_mov_b32 v12, 0
v_mov_b32 v13, 0
v_mov_b32 v14, 0
s_mov_b32 s25, 0x3f803f80
s_lshl_b32 s30, s20, 7
v_lshl_add_u32 v15, v2, 3, s30
v_lshlrev_b32 v2, 3, v2
s_waitcnt vmcnt(0)""")
    stamp(a, 1)
    for i in range(5): a(f"ds_read_b128 v[{16+4*i}:{19+4*i}], v5 offset:{1024*i}")
    for i in range(5):
        a(f"ds_read_b64_tr_b16 v[{36+4*i}:{37+4*i}], v8 offset:{1024*i}\nds_read_b64_tr_b16 v[{38+4*i}:{39+4*i}], v8 offset:{1024*i+256}")
    for i in range(5):
        a(f"s_waitcnt lgkmcnt({14-i})")
        for j in range(4):
            r = 16+4*i+j
            a(f"v_dot2c_f32_bf16 v{12-(j&1)}, s25, v{r}\nv_dot2c_f32_bf16 v{13+(j&1)}, v{r}, v{r}")
    a("""v_add_f32 v12, v11, v12
v_add_f32 v13, v13, v14
v_add_f32_dpp v12, v12, v12 quad_perm:[1,0,3,2] row_mask:0xf bank_mask:0xf
v_add_f32_dpp v13, v13, v13 quad_perm:[1,0,3,2] row_mask:0xf bank_mask:0xf
v_add_f32_dpp v12, v12, v12 quad_perm:[2,3,0,1] row_mask:0xf bank_mask:0xf
v_add_f32_dpp v13, v13, v13 quad_perm:[2,3,0,1] row_mask:0xf bank_mask:0xf
ds_write_b64 v15, v[12:13] offset:20480""")
    def xstore(base, i, sb):
        va, off = (9, 1024*i) if i < 4 else (10, 0)
        a(f"buffer_store_dwordx4 v[{base+4*i}:{base+4*i+3}], v{va}, s[12:15], s{sb} offen offset:{off} sc1")
    a("s_waitcnt lgkmcnt(0)\ns_barrier")
    for q in range(4): a(f"ds_read_b64 v[{56+2*q}:{57+2*q}], v2 offset:{20480+128*q}")
    for i in range(5): xstore(36, i, 28)
    a(f"""s_waitcnt lgkmcnt(0)
v_add_f32 v56, v56, v58
v_add_f32 v57, v57, v59
v_add_f32 v60, v60, v62
v_add_f32 v61, v61, v63
v_add_f32 v56, v56, v60
v_add_f32 v57, v57, v61
v_mul_f32 v56, 0x3acccccd, v56
v_mul_f32 v57, 0x3acccccd, v57
v_fma_f32 v57, -v56, v56, v57
v_max_f32 v57, 0, v57
v_cvt_pk_bf16_f32 v56, v56, v57
v_and_b32 v57, 0xffff0000, v56
v_lshlrev_b32 v56, 16, v56
v_add_f32 v57, 0x3727c5ac, v57
v_cvt_pk_bf16_f32 v57, v57, v57
v_lshlrev_b32 v57, 16, v57
v_sqrt_f32 v57, v57
s_nop 0
v_cvt_pk_bf16_f32 v57, v57, v57
v_lshlrev_b32 v57, 16, v57
v_rcp_f32 v57, v57""")
    for i in range(5):
        st = []
        for j in range(4):
            r = 16+4*i+j; t = 60 + 2*j
            st.append([f"v_lshlrev_b32 v{t}, 16, v{r}", f"v_and_b32 v{t+1}, 0xffff0000, v{r}",
                       f"v_sub_f32 v{t}, v{t}, v56", f"v_sub_f32 v{t+1}, v{t+1}, v56",
                       f"v_cvt_pk_bf16_f32 v{r}, v{t}, v{t+1}",
                       f"v_lshlrev_b32 v{t}, 16, v{r}", f"v_and_b32 v{t+1}, 0xffff0000, v{r}",
                       f"v_mul_f32 v{t}, v{t}, v57", f"v_mul_f32 v{t+1}, v{t+1}, v57",
                       f"v_cvt_pk_bf16_f32 v{r}, v{t}, v{t+1}"])
        for l in interleave(*st): a(l)
        a(f"ds_write_b128 v5, v[{16+4*i}:{19+4*i}] offset:{1024*i}")
        a(f"ds_read_b64_tr_b16 v[{68+4*i}:{69+4*i}], v8 offset:{1024*i}\nds_read_b64_tr_b16 v[{70+4*i}:{71+4*i}], v8 offset:{1024*i+256}")
        if i > 0:
            a("s_waitcnt lgkmcnt(3)"); xstore(68, i-1, 26)
    a("s_waitcnt lgkmcnt(0)"); xstore(68, 4, 26)
    stamp(a, 3)
    a(f"s_branch {end}")

def emit_fmt1(a, end):
    a(f"""s_load_dwordx4 s[12:15], s[0:1], 64
s_sub_u32 s21, s2, {NLN}
s_mul_i32 s22, s21, 2731
s_lshr_b32 s22, s22, 16
s_mul_i32 s23, s22, 24
s_sub_u32 s23, s21, s23
v_lshrrev_b32 v2, 3, v1
v_mul_u32_u24 v2, 3072, v2
v_and_b32 v3, 7, v1
v_lshl_add_u32 v2, v3, 4, v2
s_and_b32 s24, s20, 1
s_mul_i32 s24, s24, {40*3072}
s_mul_i32 s25, s22, {80*3072}
s_add_u32 s24, s24, s25
s_lshl_b32 s25, s23, 7
s_add_u32 s24, s24, s25
s_mul_i32 m0, s20, 5120
s_cmp_ge_u32 s20, 2
s_waitcnt lgkmcnt(0)
s_cselect_b32 s12, s14, s12
s_cselect_b32 s13, s15, s13""")
    a.srd(8, 12, D*F*2)
    for j in range(5):
        if j: a(f"s_add_u32 m0, m0, 1024\ns_add_u32 s24, s24, {8*3072}")
        a("buffer_load_dwordx4 v2, s[8:11], s24 offen lds")
    a(f"""v_bfe_u32 v3, v1, 4, 1
v_mul_u32_u24 v4, 10240, v3
v_lshrrev_b32 v3, 5, v1
v_lshl_add_u32 v4, v3, 10, v4
v_bfe_u32 v3, v1, 2, 2
v_lshl_add_u32 v4, v3, 7, v4
v_and_b32 v3, 3, v1
v_lshl_add_u32 v4, v3, 3, v4
s_lshl_b32 s24, s20, 5
v_add_u32 v4, s24, v4
s_lshl_b32 s23, s23, 2
s_add_u32 s23, s23, s20
s_mul_i32 s24, s23, 43
s_lshr_b32 s24, s24, 8
s_mul_i32 s25, s24, 6
s_sub_u32 s25, s23, s25
s_mul_i32 s24, s24, 40
s_mul_i32 s26, s22, 5
s_add_u32 s24, s24, s26
s_mul_i32 s24, s24, 6
s_add_u32 s24, s24, s25
s_lshl_b32 s24, s24, 10
s_add_u32 s24, s24, {WS_W1}
v_lshlrev_b32 v5, 4, v1
s_mul_i32 s26, s22, 96
s_add_u32 s26, s26, s23
s_lshl_b32 s26, s26, 7
s_add_u32 s26, s26, {WS_CS}
v_and_b32 v6, 31, v1
v_lshlrev_b32 v6, 2, v6
v_mov_b32 v8, 0
v_mov_b32 v9, 0
s_mov_b32 s27, 0x3f803f80""")
    a.srd(12, 4, WS_SIZE)
    a("s_waitcnt vmcnt(0)\ns_barrier")
    stamp(a, 1)
    for s in range(5):
        a(f"ds_read_b64_tr_b16 v[{16+4*s}:{17+4*s}], v4 offset:{2048*s}\nds_read_b64_tr_b16 v[{18+4*s}:{19+4*s}], v4 offset:{2048*s+512}")
    for s in range(5):
        a(f"s_waitcnt lgkmcnt({8-2*s})\nbuffer_store_dwordx4 v[{16+4*s}:{19+4*s}], v5, s[12:15], s24 offen sc1")
        if s < 4: a(f"s_add_u32 s24, s24, 6144")
        for j in range(4): a(f"v_dot2c_f32_bf16 v{8+(j&1)}, s27, v{16+4*s+j}")
    a(f"""v_add_f32 v8, v8, v9
v_mov_b32 v9, v8
v_permlane32_swap_b32 v8, v9
v_add_f32 v8, v8, v9
s_mov_b64 exec, 0xffffffff
buffer_store_dword v8, v6, s[12:15], s26 offen sc1
s_mov_b64 exec, -1""")
    stamp(a, 3)
    a(f"s_branch {end}")

def emit_l1(a):
    name = "prep_kernel"
    Ctx.swave = 20; Ctx.vtmp = (112, 113)
    n = NLN + NF1 + NKG
    a.begin_kernel(name, n, 256, 3*TAB)
    end = a.label("l1_end"); end2 = a.label("l1_exit"); kg = a.label("l1_kgen"); f1 = a.label("l1_f1")
    a(f"""s_getpc_b64 s[34:35]
s_cmp_ge_u32 s2, {n}
s_cbranch_scc1 {end2}
s_load_dwordx2 s[4:5], s[0:1], 104
s_and_b32 s34, s34, 0xffffff00
v_lshrrev_b32 v2, 6, v0
v_and_b32 v1, 63, v0""")
    code_srd(a, 36, 34, name, "prep_code_end")
    nopf = a.label("nopf")
    a(f"""v_readfirstlane_b32 s20, v2
s_cmp_ge_u32 s2, 16
s_cbranch_scc1 {nopf}
v_lshlrev_b32 v3, 7, v0
buffer_load_dword v114, v3, s[36:39], 0 offen
{nopf}:""")
    stamp_init(a, 4); stamp(a, 0)
    a(f"s_cmp_ge_u32 s2, {NLN+NF1}\ns_cbranch_scc1 {kg}\ns_cmp_ge_u32 s2, {NLN}\ns_cbranch_scc1 {f1}")
    emit_ln(a, end)
    a(f"{f1}:"); emit_fmt1(a, end)
    a(f"{kg}:"); emit_kgen(a, end)
    a(f"{end}:")
    stamp_flush(a, 0, 4)
    a(f"{end2}:\ns_endpgm\nprep_code_end:")
    a.end_kernel(name, 116, sgpr=100)
```

```python
from gen_common import *
from sched import Sched

R = 7; NS = 20
WSL = 12288
LH = R * WSL
LC = LH + R*8192
LP = LC + 8192
LT1 = LP + 4096
LT2 = LT1 + 2048
LDSP = LT2 + 1024
CK = LH
CU = CK + 4*KIMG
CX = CU + 18432
assert CX + 16384 <= LDSP
E = [LH + 10240*i for i in range(3)]
LR = LH + 30720
PAIR = [(6*WSL, 0), (WSL, 2*WSL), (3*WSL, 4*WSL), (5*WSL, E[0]), (E[1], E[2])]
NS2 = 12; DH = 5
S_MT, S_NT, S_W, S_XCD, S_J = 21, 22, 23, 24, 25

def bar(a): a("s_barrier")

def poll(a, loads, regs, exec_mask=None):
    lp = a.label("poll"); ok = a.label("pollok")
    a(f"s_mov_b32 s47, {SPIN}")
    if exec_mask is not None: a(f"s_mov_b64 exec, {exec_mask}")
    a(f"{lp}:")
    for l in loads: a(l)
    a("s_waitcnt vmcnt(0)")
    r = list(regs)
    while len(r) > 1:
        if len(r) >= 3: a(f"v_max3_u32 v{r[0]}, v{r[0]}, v{r[1]}, v{r[2]}"); r = [r[0]] + r[3:]
        else: a(f"v_max_u32 v{r[0]}, v{r[0]}, v{r[1]}"); r = [r[0]]
    a(f"""v_cmp_eq_u32 vcc, -1, v{r[0]}
s_cbranch_vccz {ok}
s_sleep 1
s_sub_u32 s47, s47, 1
s_cmp_lg_u32 s47, 0
s_cbranch_scc1 {lp}
{ok}:""")
    if exec_mask is not None: a("s_mov_b64 exec, -1")

def signal(a, sreg, vt):
    sk = a.label("nosig")
    a(f"""s_cmp_lg_u32 s20, 0
s_cbranch_scc1 {sk}
v_mov_b32 v{vt}, 0
s_mov_b64 exec, 1
buffer_store_dword v{vt}, v{vt}, s[8:11], s{sreg} offen sc1
s_mov_b64 exec, -1
{sk}:""")

def emit_conv(a):
    a(f"""s_load_dwordx2 s[6:7], s[0:1], 48
s_mul_i32 s26, s{S_XCD}, 20
s_add_u32 s26, s26, s{S_J}
s_lshl_b32 s27, s26, 2
s_add_u32 s27, s27, s20
v_lshrrev_b32 v2, 3, v1
v_mul_u32_u24 v2, 20480, v2
v_bfe_u32 v3, v1, 1, 2
v_lshrrev_b32 v10, 4, v1
v_xor_b32 v3, v3, v10
v_lshl_add_u32 v2, v3, 5, v2
v_and_b32 v3, 1, v1
v_lshl_add_u32 v2, v3, 4, v2
s_lshl_b32 s28, s26, 7
s_mul_i32 s29, s20, {4*8*20480}
s_add_u32 s28, s28, s29
s_add_u32 s28, s28, {WS_U}
s_lshl_b32 s29, s20, 12
s_add_u32 m0, s29, {CU + 2048}
v_lshlrev_b32 v3, 4, v1
v_lshlrev_b32 v4, 2, v1
s_mul_i32 s30, s27, {KIMG}
s_add_u32 s30, s30, {WS_K}
s_mul_i32 s31, s20, {KIMG}
s_add_u32 s31, s31, {CK}
s_waitcnt lgkmcnt(0)""")
    a.srd(8, 4, WS_SIZE)
    for k in range(4):
        if k: a(f"s_add_u32 m0, m0, 1024\ns_add_u32 s28, s28, {8*20480}")
        a("buffer_load_dwordx4 v2, s[8:11], s28 offen lds")
    a(f"s_mov_b32 m0, s31\ns_add_u32 s32, s30, 256\nbuffer_load_dword v4, s[8:11], s30 offen lds\ns_add_u32 m0, s31, 256")
    for k in range(8):
        if k == 4: a("s_add_u32 m0, m0, 4096\ns_add_u32 s32, s32, 4096")
        a(f"buffer_load_dwordx4 v3, s[8:11], s32 offen offset:{1024*(k%4)} lds")
    VA, VB, VEU, VEX, VO = 176, 184, 188, 189, 5
    a(f"""s_lshl_b32 s33, s27, 1
s_and_b32 s33, s33, 0xfffffffc
s_load_dword s34, s[6:7], s33
v_lshrrev_b32 v6, 1, v1
v_mul_u32_u24 v6, 20480, v6
v_and_b32 v7, 1, v1
v_lshl_add_u32 v6, v7, 4, v6
s_lshl_b32 s28, s27, 5
s_add_u32 s28, s28, {WS_X}
s_add_u32 m0, s29, {CX}
v_mov_b32 v12, 0
v_mov_b32 v13, 0
v_lshlrev_b32 v8, 3, v0
ds_write_b64 v8, v[12:13] offset:0
v_and_b32 v9, 15, v1
v_lshlrev_b32 v11, 3, v10
v_sub_u32 v11, v9, v11
v_add_u32 v11, 73, v11
v_lshl_add_u32 v{VA}, v11, 2, s31""".replace("ds_write_b64 v8, v[12:13] offset:0", f"v_add_u32 v8, {CU}, v8\nds_write_b64 v8, v[12:13]"))
    for k in range(4):
        if k: a(f"s_add_u32 m0, m0, 1024\ns_add_u32 s28, s28, {32*20480}")
        a("buffer_load_dwordx4 v6, s[8:11], s28 offen lds")
    for mm in range(1, 8): a(f"v_add_u32 v{VA+mm}, {1024*mm}, v{VA}")
    a(f"v_lshrrev_b32 v11, 1, v10\nv_add_u32 v11, v11, v9\nv_and_b32 v12, 1, v10\nv_lshlrev_b32 v12, 4, v12")
    for r4 in range(4):
        a(f"""v_add_u32 v13, {15 - 2*r4 - 8}, v11
v_bfe_u32 v14, v13, 1, 2
v_xor_b32 v14, s20, v14
v_lshl_add_u32 v14, v14, 5, v12
v_lshl_add_u32 v14, v13, 7, v14
v_add_u32 v{VB+r4}, {CU}, v14""")
    a(f"""v_bfe_u32 v14, v9, 1, 2
v_xor_b32 v14, s20, v14
v_lshlrev_b32 v14, 5, v14
v_lshl_add_u32 v14, v9, 7, v14
v_lshl_add_u32 v14, v10, 3, v14
v_add_u32 v{VEU}, {CU + 2048}, v14
v_lshlrev_b32 v11, 5, v9
v_lshl_add_u32 v12, v10, 3, v11
s_add_u32 s28, s29, {CX}
v_add_u32 v{VEX}, s28, v12
v_and_b32 v12, 1, v10
v_lshl_add_u32 v11, v12, 9, v11
v_lshrrev_b32 v12, 1, v10
v_lshl_add_u32 v{VO}, v12, 4, v11
s_lshl_b32 s35, s27, 12
s_add_u32 s35, s35, {WS_H}
s_and_b32 s33, s27, 1
s_lshl_b32 s33, s33, 4
s_lshl_b32 s36, s26, 6
s_add_u32 s36, s36, {WS_F1}
s_waitcnt lgkmcnt(0)
s_lshr_b32 s34, s34, s33
s_lshl_b32 s34, s34, 16
s_waitcnt vmcnt(4)""")
    bar(a)
    stamp(a, 1)
    S = Sched(a, 2)
    AS = [48, 112]; BS = [80, 144]
    def loads(rho):
        st = rho & 1; out = []
        for n in range(8):
            b = BS[st] + 4*n; r = AS[st] + 4*n
            out.append((f"ds_read_b128 v[{b}:{b+3}], v{VB + (rho & 3)} offset:{2048*n + 1024*(1 - (rho >> 2))}", ("B", rho, n)))
            out.append((f"ds_read2_b32 v[{r}:{r+1}], v{VA+n} offset0:{32*rho+6} offset1:{32*rho+4}", None))
            out.append((f"ds_read2_b32 v[{r+2}:{r+3}], v{VA+n} offset0:{32*rho+2} offset1:{32*rho}", ("A", rho, n)))
        return out
    order = []
    for n in range(8):
        sh = [(n, j) for j in range(n)] + [(m, n) for m in range(n)] + [(n, n)]
        sh = [p for p in sh if p[0] + p[1] <= 7]
        sh.sort(key=lambda p: p[0] + p[1])
        order += sh
    l0 = loads(0)
    for t, tag in l0[:15]: S.ds(t, tag)
    for t, tag in l0[15:]: S.add(t, 2, tag, ds=True, hi=True)
    T1, XF = 190, 222
    def unp(d, s): return [f"v_lshlrev_b32 v{d}, 16, v{s}", f"v_and_b32 v{d+1}, 0xffff0000, v{s}", f"v_lshlrev_b32 v{d+2}, 16, v{s+1}", f"v_and_b32 v{d+3}, 0xffff0000, v{s+1}"]
    def pre_reads(T):
        t = T1 + 4*T; x = XF + 4*T
        S.add(f"ds_read_b64 v[{t+2}:{t+3}], v{VEU} offset:{2048*T}", 2, ("u", T), ds=True)
        S.add(f"ds_read_b64 v[{x+2}:{x+3}], v{VEX} offset:{512*T}", 2, ("x", T), ds=True)
    def pre(T):
        t = T1 + 4*T; x = XF + 4*T
        for l in unp(t, t+2): S.add(l, needs=[("u", T)])
        for i in range(4): S.add(f"v_mul_f32 v{t+i}, s34, v{t+i}")
        S.add(f"v_cvt_pk_bf16_f32 v{t+3}, v{t+2}, v{t+3}"); S.add(f"v_cvt_pk_bf16_f32 v{t+2}, v{t}, v{t+1}")
        for l in unp(x, x+2): S.add(l, needs=[("x", T)])
        for l in unp(t, t+2): S.add(l)
    def fin(T, after):
        c = 16 + 4*T; t = T1 + 4*T; x = XF + 4*T; o = 48 + 4*(T >> 1) + 2*(T & 1)
        pack = [f"v_cvt_pk_bf16_f32 v{o}, v{c}, v{c+1}", f"v_cvt_pk_bf16_f32 v{o+1}, v{c+2}, v{c+3}"]
        ls = pack + unp(c, o) + [f"v_add_f32 v{c+i}, v{c+i}, v{t+i}" for i in range(4)] + pack + unp(c, o) + [f"v_add_f32 v{c+i}, v{c+i}, v{x+i}" for i in range(4)] + pack
        for l in ls: S.add(l, after=after)
        if T & 1:
            q = 48 + 4*(T >> 1)
            S.add(f"v_permlane16_swap_b32 v{q}, v{q+2}", after=after); S.add(f"v_permlane16_swap_b32 v{q+1}, v{q+3}", after=after)
            S.add(f"buffer_store_dwordx4 v[{q}:{q+3}], v{VO}, s[8:11], s35 offen offset:{512*(T-1)} sc1", after=after)
    started = set()
    for rho in range(8):
        st = rho & 1
        if rho < 7:
            for t, tag in loads(rho + 1): S.add(t, 2, tag, ds=True, hi=True)
        if rho == 2:
            S.add("s_waitcnt vmcnt(0)", 0)
            for T in range(6): pre_reads(T)
        if rho == 3:
            pre_reads(6); pre_reads(7)
            for T in range(8): pre(T)
        if rho == 7:
            last = {}
            for i, (mm, j) in enumerate(order): last[mm + j] = S.n + i
            for T in range(8): fin(T, last[T] + 5)
        for (mm, j) in order:
            T = mm + j; c = 16 + 4*T
            src = f"v[{c}:{c+3}]" if T in started else "0"
            started.add(T)
            S.main(f"v_mfma_f32_16x16x32_bf16 v[{c}:{c+3}], v[{AS[st]+4*mm}:{AS[st]+4*mm+3}], v[{BS[st]+4*j}:{BS[st]+4*j+3}], {src}",
                   needs=[("A", rho, mm), ("B", rho, j)])
    stamp(a, 2)
    S.flush()

def emit_fmt2(a):
    a(f"""s_load_dwordx2 s[12:13], s[0:1], 80
s_sub_u32 s26, s{S_J}, 20
s_mul_i32 s27, s{S_XCD}, 10
s_add_u32 s36, s27, s26
s_add_u32 s36, s36, 160
s_lshl_b32 s36, s36, 6
s_add_u32 s36, s36, {WS_F1}
v_lshrrev_b32 v2, 3, v1
v_mul_u32_u24 v2, 1280, v2
v_and_b32 v3, 7, v1
v_lshl_add_u32 v2, v3, 4, v2
s_mul_i32 s28, s20, {48*1280}
s_mul_i32 s29, s{S_XCD}, {192*1280}
s_add_u32 s28, s28, s29
s_lshl_b32 s29, s26, 7
s_add_u32 s28, s28, s29
s_mul_i32 s29, s20, 6144
s_add_u32 m0, s29, {LH}
s_waitcnt lgkmcnt(0)""")
    a.srd(8, 12, D*F*2)
    for j in range(6):
        if j: a(f"s_add_u32 m0, m0, 1024\ns_add_u32 s28, s28, {8*1280}")
        a("buffer_load_dwordx4 v2, s[8:11], s28 offen lds")
    a(f"""v_lshrrev_b32 v3, 5, v1
v_lshlrev_b32 v4, 11, v3
v_bfe_u32 v3, v1, 4, 1
v_lshl_add_u32 v4, v3, 9, v4
v_bfe_u32 v3, v1, 2, 2
v_lshl_add_u32 v4, v3, 7, v4
v_and_b32 v3, 3, v1
v_lshl_add_u32 v4, v3, 3, v4
s_lshl_b32 s28, s20, 5
s_add_u32 s28, s28, {LH}
v_add_u32 v4, s28, v4
s_lshl_b32 s26, s26, 2
s_add_u32 s26, s26, s20
s_mul_i32 s28, s26, 52
s_lshr_b32 s28, s28, 8
s_mul_i32 s29, s28, 5
s_sub_u32 s29, s26, s29
s_mul_i32 s28, s28, 48
s_mul_i32 s30, s{S_XCD}, 6
s_add_u32 s28, s28, s30
s_mul_i32 s28, s28, 5
s_add_u32 s28, s28, s29
s_lshl_b32 s28, s28, 10
s_add_u32 s28, s28, {WS_W2}
v_lshlrev_b32 v5, 4, v1""")
    a.srd(8, 4, WS_SIZE)
    a("s_waitcnt vmcnt(0)")
    bar(a)
    stamp(a, 1)
    for s in range(6):
        a(f"ds_read_b64_tr_b16 v[{16+4*s}:{17+4*s}], v4 offset:{4096*s}\nds_read_b64_tr_b16 v[{18+4*s}:{19+4*s}], v4 offset:{4096*s+1024}")
    for s in range(6):
        a(f"s_waitcnt lgkmcnt({10-2*s})\nbuffer_store_dwordx4 v[{16+4*s}:{19+4*s}], v5, s[8:11], s28 offen sc1")
        if s < 5: a(f"s_add_u32 s28, s28, 5120")

def emit_g1_cons(a):
    ACC = 32; FS = [128, 148]
    VW0, VW1, VH = 2, 3, 4
    a(f"""s_and_b32 s26, s20, 1
s_lshr_b32 s27, s20, 1
s_mul_i32 s28, s26, 3072
v_lshl_add_u32 v{VW0}, v1, 4, s28
v_add_u32 v{VW1}, {5*WSL}, v{VW0}
v_add_u32 v13, {LC}, v{VW0}
v_bfe_u32 v6, v1, 2, 2
v_lshrrev_b32 v7, 5, v1
v_lshl_add_u32 v8, v7, 3, v6
v_lshlrev_b32 v8, 8, v8
v_bfe_u32 v14, v1, 4, 1
v_lshlrev_b32 v9, 5, v14
v_and_b32 v10, 3, v1
v_lshl_add_u32 v9, v10, 3, v9
v_add_u32 v8, v8, v9
v_add_u32 v8, {LH}, v8
s_lshl_b32 s28, s27, 1
v_xor_b32 v9, s28, v6
v_lshl_add_u32 v{VH}, v9, 6, v8
v_xor_b32 v9, 1, v9
v_lshl_add_u32 v{VH+1}, v9, 6, v8
v_and_b32 v10, 31, v1
s_lshl_b32 s28, s27, 6
v_add_u32 v10, s28, v10
v_lshlrev_b32 v11, 4, v10
v_add_u32 v11, {LT1}, v11
v_lshlrev_b32 v12, 3, v10
v_add_u32 v12, {LT2}, v12
v_mul_u32_u24 v14, 49152, v14
v_lshl_add_u32 v14, v7, 8, v14
v_and_b32 v15, 15, v1
v_lshl_add_u32 v14, v15, 4, v14
s_lshl_b32 s28, s{S_MT}, 3
s_lshl_b32 s29, s27, 2
s_add_u32 s28, s28, s29
s_mul_i32 s28, s28, 49152
s_mul_i32 s29, s{S_NT}, 6
s_mul_i32 s30, s26, 3
s_add_u32 s29, s29, s30
s_lshl_b32 s29, s29, 9
s_add_u32 s28, s28, s29
s_add_u32 s28, s28, {WS_HF}
s_add_u32 s29, s28, {2*49152}
s_lshl_b32 s36, s{S_MT}, 4
s_add_u32 s36, s36, s{S_NT}
s_lshl_b32 s36, s36, 6
s_add_u32 s36, s36, {WS_F2}""")
    bar(a)
    bar(a)
    stamp(a, 4)
    S = Sched(a, 5)
    def loads(k):
        s, ks = k >> 1, k & 1; slot = s % R; f = FS[k & 1]; out = []
        vb, base = (VW0, slot*WSL) if slot < 5 else (VW1, (slot-5)*WSL)
        def A(ti): out.append((f"ds_read_b128 v[{f+4*ti}:{f+4*ti+3}], v{vb} offset:{base + ks*6144 + ti*1024}", ("A", k, ti)))
        def B(tt):
            o = slot*8192 + ks*4096; r = f + 12 + 4*tt
            out.append((f"ds_read_b64_tr_b16 v[{r}:{r+1}], v{VH+tt} offset:{o}", None))
            out.append((f"ds_read_b64_tr_b16 v[{r+2}:{r+3}], v{VH+tt} offset:{o+1024}", ("B", k, tt)))
        A(0); B(0); B(1); A(1); A(2)
        return out
    def mm(k, first=False):
        f = FS[k & 1]
        for ti in range(3):
            for tt in range(2):
                c = ACC + 16*(2*ti + tt)
                S.main(f"v_mfma_f32_32x32x16_bf16 v[{c}:{c+15}], v[{f+4*ti}:{f+4*ti+3}], v[{f+12+4*tt}:{f+12+4*tt+3}], {'0' if first else f'v[{c}:{c+15}]'}",
                       needs=[("A", k, ti), ("B", k, tt)])
    for t, tag in loads(0): S.ds(t, tag)
    for k in range(2*NS):
        if k + 1 < 2*NS:
            for t, tag in loads(k + 1): S.add(t, 2, tag, ds=True, hi=True)
        if k == 2*NS - 1:
            f = FS[0]
            for t, tag in ([(f"ds_read_b128 v[{f}:{f+3}], v13", ("A", 40, 0)), (f"ds_read_b128 v[{f+12}:{f+15}], v11", ("B", 40, 0)),
                            (f"ds_read_b128 v[{f+16}:{f+19}], v11 offset:512", ("B", 40, 1)),
                            (f"ds_read_b128 v[{f+4}:{f+7}], v13 offset:1024", ("A", 40, 1)), (f"ds_read_b128 v[{f+8}:{f+11}], v13 offset:2048", ("A", 40, 2)),
                            (f"ds_read_b64 v[16:17], v12", "c0"), (f"ds_read_b64 v[18:19], v12 offset:256", "c1")]):
                S.add(t, 2, tag, ds=True, hi=True)
        mm(k, k == 0)
        if (k & 1) == 0:
            S.flush(); a("s_waitcnt lgkmcnt(0)"); S.done = S.issued
            bar(a)
    mm(40)
    stamp(a, 5)
    S.flush(); S.wait("c0", "c1")
    n = 0
    for ti in range(3):
        for tt in range(2):
            cc = 16 + 2*tt
            c = ACC + 16*(2*ti + tt); o = 128 + 4*(n % 4); T = 168; n += 1
            st = []
            for r in range(0, 8, 2):
                t = T + 2*r
                st.append([f"v_pk_mul_f32 v[{t}:{t+1}], v[{c+r}:{c+r+1}], v[{cc}:{cc+1}] op_sel_hi:[1,0]",
                           f"v_exp_f32 v{t}, v{t}", f"v_exp_f32 v{t+1}, v{t+1}",
                           f"v_pk_mul_f32 v[{t+2}:{t+3}], v[{c+r}:{c+r+1}], v[{c+8+r}:{c+9+r}]",
                           f"v_pk_fma_f32 v[{t}:{t+1}], v[{t}:{t+1}], v[{cc}:{cc+1}], v[{cc}:{cc+1}] op_sel:[0,1,1] op_sel_hi:[1,1,1]",
                           f"v_rcp_f32 v{t}, v{t}", f"v_rcp_f32 v{t+1}, v{t+1}",
                           f"v_pk_mul_f32 v[{t+2}:{t+3}], v[{t+2}:{t+3}], v[{t}:{t+1}]",
                           f"v_cvt_pk_bf16_f32 v{o+r//2}, v{t+2}, v{t+3}"])
            for l in interleave(*st): a(l)
            a(f"buffer_store_dwordx4 v[{o}:{o+3}], v14, s[8:11], s{28+tt} offen offset:{512*ti} sc1")
    stamp(a, 6)

def emit_g2_cons(a, end):
    ACC = 16; FA = [40, 60]; HB = 80
    a(f"""s_load_dwordx2 s[6:7], s[0:1], 88
v_lshlrev_b32 v2, 4, v1
v_add_u32 v3, 61440, v2
s_lshr_b32 s26, s{S_NT}, 3
s_lshl_b32 s27, s{S_MT}, 1
s_add_u32 s26, s26, s27
s_lshl_b32 s26, s26, 2
s_add_u32 s26, s26, s20
s_mul_i32 s27, s26, 49152
s_add_u32 s27, s27, {WS_HF}
v_lshrrev_b32 v6, 4, v1
v_bfe_u32 v7, v1, 2, 2
v_lshl_add_u32 v7, v6, 2, v7
v_lshlrev_b32 v7, 7, v7
v_and_b32 v8, 3, v1
v_lshl_add_u32 v7, v8, 3, v7
s_lshl_b32 s28, s20, 5
s_add_u32 s28, s28, {LR}
v_add_u32 v7, s28, v7
v_and_b32 v8, 15, v1
v_mul_u32_u24 v8, 1280, v8
s_mul_i32 s28, s26, {16*1280}
s_and_b32 s29, s{S_NT}, 7
s_mul_i32 s29, s29, 160
s_add_u32 s28, s28, s29
v_lshl_add_u32 v9, v6, 3, v8
v_and_b32 v10, 1, v6
v_lshl_add_u32 v8, v10, 5, v8
v_lshrrev_b32 v10, 1, v6
v_lshl_add_u32 v8, v10, 4, v8
s_waitcnt vmcnt(0)""")
    bar(a)
    signal(a, 36, 10)
    a("s_waitcnt lgkmcnt(0)")
    a.srd(12, 6, L*D*2)
    bar(a)
    stamp(a, 7)
    V = Vm(a)
    def hload(s):
        r = HB + 16*(s % DH)
        for q in range(4): V.op(f"buffer_load_dwordx4 v[{r+4*q}:{r+4*q+3}], v2, s[8:11], s27 offen offset:{1024*q} sc1", ("H", 4*s + q))
        if s < NS2 - 1: a("s_add_u32 s27, s27, 4096")
    for s in range(DH): hload(s)
    S = Sched(a, 2)
    def loads(k):
        s, ks = k >> 2, k & 3; f = FA[k & 1]; out = []
        for j in range(5):
            ad = PAIR[s % 5][ks >> 1] + (ks & 1)*5120 + j*1024
            vb, o = (2, ad) if ad < 61440 else (3, ad - 61440)
            out.append((f"ds_read_b128 v[{f+4*j}:{f+4*j+3}], v{vb} offset:{o}", ("A", k, j)))
        return out
    for t, tag in loads(0): S.ds(t, tag)
    NK = 4*NS2
    for k in range(NK):
        if k + 1 < NK:
            for t, tag in loads(k + 1): S.add(t, 2, tag, ds=True, hi=True)
        else:
            for j in range(5): S.add(f"ds_read_b64_tr_b16 v[{FA[0]+2*j}:{FA[0]+2*j+1}], v7 offset:{2048*j}", 2, ("r", j), ds=True, hi=True)
        V.wait(("H", k))
        if k == 0: stamp(a, 8)
        hb = HB + 16*((k >> 2) % DH) + 4*(k & 3); f = FA[k & 1]
        for j in range(5):
            c = ACC + 4*j
            S.main(f"v_mfma_f32_16x16x32_bf16 v[{c}:{c+3}], v[{f+4*j}:{f+4*j+3}], v[{hb}:{hb+3}], {'0' if k == 0 else f'v[{c}:{c+3}]'}", needs=[("A", k, j)])
        if (k & 3) == 3 and (k >> 2) + DH < NS2: hload((k >> 2) + DH)
        if (k & 3) == 2 and (k >> 2) < NS2 - 1:
            S.flush(); a("s_waitcnt lgkmcnt(0)"); S.done = S.issued
            bar(a)
    stamp(a, 9)
    S.flush(); S.wait(("r", 4))
    odd = a.label("g2_odd")
    def fin(j, o):
        c = ACC + 4*j; h = FA[0] + 2*j; t = 60 + 4*(j % 4)
        return [f"v_cvt_pk_bf16_f32 v{o}, v{c}, v{c+1}", f"v_cvt_pk_bf16_f32 v{o+1}, v{c+2}, v{c+3}",
                f"v_lshlrev_b32 v{t}, 16, v{h}", f"v_and_b32 v{t+1}, 0xffff0000, v{h}", f"v_lshlrev_b32 v{t+2}, 16, v{h+1}", f"v_and_b32 v{t+3}, 0xffff0000, v{h+1}",
                f"v_lshlrev_b32 v{c}, 16, v{o}", f"v_and_b32 v{c+1}, 0xffff0000, v{o}", f"v_lshlrev_b32 v{c+2}, 16, v{o+1}", f"v_and_b32 v{c+3}, 0xffff0000, v{o+1}"] + \
               [f"v_add_f32 v{c+i}, v{c+i}, v{t+i}" for i in range(4)] + \
               [f"v_cvt_pk_bf16_f32 v{o}, v{c}, v{c+1}", f"v_cvt_pk_bf16_f32 v{o+1}, v{c+2}, v{c+3}"]
    def variant(single, pairs):
        for (j0, j1), q in zip(pairs, (80, 84)):
            for l in interleave(fin(j0, q), fin(j1, q + 2)): a(l)
            a(f"v_permlane16_swap_b32 v{q}, v{q+2}\nv_permlane16_swap_b32 v{q+1}, v{q+3}")
            a(f"buffer_store_dwordx4 v[{q}:{q+3}], v8, s[12:15], s28 offen offset:{32*j0} sc1")
        for l in fin(single, 88): a(l)
        a(f"buffer_store_dwordx2 v[88:89], v9, s[12:15], s28 offen offset:{32*single} sc1")
        stamp(a, 10)
        a(f"s_branch {end}")
    a(f"s_bitcmp1_b32 s{S_NT}, 0\ns_cbranch_scc1 {odd}")
    variant(4, ((0, 1), (2, 3)))
    a(f"{odd}:")
    variant(0, ((1, 2), (3, 4)))

def emit_helper(a, end):
    SA, QA, TMP = 96, 104, 112
    a(f"""v_lshlrev_b32 v2, 4, v1
v_lshrrev_b32 v3, 4, v1
v_and_b32 v4, 15, v1
v_lshlrev_b32 v6, 2, v3
v_xor_b32 v6, v6, v4
v_lshlrev_b32 v6, 4, v6
v_lshl_add_u32 v5, v3, 12, v6
v_lshl_add_u32 v6, v3, 8, v6
s_lshl_b32 s26, s{S_W}, 11
s_add_u32 s26, s26, {LH}
v_add_u32 v6, s26, v6
s_mul_i32 s27, s{S_W}, 3072
s_mul_i32 s28, s{S_NT}, {40*6144}
s_add_u32 s28, s28, s27
s_add_u32 s28, s28, {WS_W1}
s_lshl_b32 s29, s{S_W}, 15
s_lshl_b32 s30, s{S_MT}, 8
s_add_u32 s29, s29, s30
s_add_u32 s29, s29, {WS_H}
s_mul_i32 s30, s{S_NT}, 5
s_lshr_b32 s30, s30, 2
s_mov_b32 s31, s30
s_mov_b32 s32, s30
s_waitcnt lgkmcnt(0)""")
    a.srd(8, 4, WS_SIZE)
    V = Vm(a)
    def step(s): a(f"s_add_u32 s{s}, s{s}, 1\ns_cmp_eq_u32 s{s}, {NS}\ns_cselect_b32 s{s}, 0, s{s}")
    def issue_w(t, tag=None):
        a(f"s_mul_i32 s33, s31, {WSL}\ns_add_u32 m0, s27, {(t % R)*WSL}\ns_add_u32 s33, s33, s28")
        for j in range(3): V.op(f"buffer_load_dwordx4 v2, s[8:11], s33 offen offset:{1024*j} lds", tag if j == 2 else None)
        step(31)
    def issue_h(t, tag=None):
        a(f"s_lshl_b32 s33, s32, 17\ns_add_u32 m0, s26, {(t % R)*8192}\ns_add_u32 s33, s33, s29")
        V.op("buffer_load_dwordx4 v5, s[8:11], s33 offen sc1 lds")
        a(f"s_add_u32 m0, s26, {(t % R)*8192 + 1024}\ns_add_u32 s33, s33, 16384")
        V.op("buffer_load_dwordx4 v5, s[8:11], s33 offen sc1 lds", tag)
        step(32)
    bar(a)
    for t in range(R): issue_w(t)
    a(f"""s_and_b32 s34, s{S_NT}, 7
s_mul_i32 s35, s34, {48*5120}
s_mul_i32 s36, s{S_W}, 5120
s_add_u32 s35, s35, s36
s_add_u32 s35, s35, {WS_W2}
s_and_b32 s36, s{S_W}, 1
s_mul_i32 s36, s36, 5120
s_mul_i32 s37, s34, 80
s_mul_i32 s38, s{S_W}, 24
s_add_u32 s37, s37, s38
s_lshl_b32 s37, s37, 12
s_lshr_b32 s38, s{S_NT}, 3
s_lshl_b32 s39, s{S_MT}, 1
s_add_u32 s38, s38, s39
s_lshl_b32 s38, s38, 7
s_add_u32 s37, s37, s38
s_add_u32 s37, s37, {WS_H}
s_mul_i32 s38, s{S_W}, 3072
v_lshrrev_b32 v15, 3, v1
v_lshlrev_b32 v15, 12, v15
v_and_b32 v16, 7, v1
v_lshl_add_u32 v15, v16, 4, v15
v_and_b32 v7, 0xff, v0
v_lshlrev_b32 v8, 2, v7
s_mul_i32 s39, s{S_NT}, 768
s_add_u32 s39, s39, {WS_CS}
v_lshrrev_b32 v9, 5, v7
v_lshlrev_b32 v9, 10, v9
v_and_b32 v10, 31, v7
v_lshl_add_u32 v9, v10, 4, v9
v_add_u32 v9, {LC}, v9
v_lshrrev_b32 v10, 1, v3
v_lshlrev_b32 v10, 2, v10
v_lshl_add_u32 v10, v4, 6, v10
v_and_b32 v11, 1, v3
v_lshl_add_u32 v10, v11, 5, v10
s_lshl_b32 s40, s{S_W}, 10
s_add_u32 s40, s40, {LP}
v_add_u32 v10, s40, v10
v_and_b32 v11, 0x7f, v7
v_lshlrev_b32 v12, 3, v11
s_lshl_b32 s41, s{S_MT}, 4
s_add_u32 s42, s41, s{S_NT}
s_lshl_b32 s42, s42, 10
s_add_u32 s42, s42, {WS_ST}
s_lshl_b32 s43, s{S_W}, 2
s_add_u32 s43, s43, s41
s_lshl_b32 s43, s43, 10
s_add_u32 s43, s43, {WS_ST}
s_lshl_b32 s41, s41, 6
s_add_u32 s41, s41, {WS_F2}
s_lshl_b32 s44, s30, 3
v_add_u32 v17, s44, v1
v_subrev_u32 v18, 160, v17
v_min_u32 v17, v17, v18
v_lshlrev_b32 v17, 6, v17
v_lshlrev_b32 v18, 6, v1
v_add_u32 v19, 4096, v18
v_add_u32 v20, 8192, v18
v_add_u32 v21, 12288, v18
v_min_u32 v21, {239*64}, v21
s_lshr_b32 s46, s{S_W}, 1
s_mov_b32 s45, {WS_F1}""")
    bar(a)
    stamp(a, 3)
    sk = a.label("nopoll")
    a(f"s_cmp_lg_u32 s{S_W}, 0\ns_cbranch_scc1 {sk}")
    poll(a, ["buffer_load_dword v22, v17, s[8:11], s45 offen sc1"], [22], "0xffff")
    a(f"{sk}:")
    bar(a)
    stamp(a, 4)
    issue_h(0, 0); issue_h(1, 1)
    sk = a.label("nopoll")
    a(f"s_cmp_lg_u32 s{S_W}, 0\ns_cbranch_scc1 {sk}")
    poll(a, [f"buffer_load_dword v{22+i}, v{18+i}, s[8:11], s45 offen sc1" for i in range(4)], [22, 23, 24, 25])
    a(f"{sk}:")
    V.drain()
    bar(a)
    stamp(a, 5)
    def stats(t, first):
        o = (t % R)*8192
        a(f"ds_read_b128 v[24:27], v6 offset:{o}\nds_read_b128 v[28:31], v6 offset:{o+1024}")
        for q in range(2):
            a(f"s_waitcnt lgkmcnt({1-q})")
            st = []
            for j in range(4):
                x = 24 + 4*q + j; t0 = TMP + 2*j; e = 2*j
                if first and q == 0:
                    st.append([f"v_lshlrev_b32 v{SA+e}, 16, v{x}", f"v_and_b32 v{SA+e+1}, 0xffff0000, v{x}",
                               f"v_mul_f32 v{QA+e}, v{SA+e}, v{SA+e}", f"v_mul_f32 v{QA+e+1}, v{SA+e+1}, v{SA+e+1}"])
                else:
                    st.append([f"v_lshlrev_b32 v{t0}, 16, v{x}", f"v_and_b32 v{t0+1}, 0xffff0000, v{x}",
                               f"v_add_f32 v{SA+e}, v{SA+e}, v{t0}", f"v_add_f32 v{SA+e+1}, v{SA+e+1}, v{t0+1}",
                               f"v_fmac_f32 v{QA+e}, v{t0}, v{t0}", f"v_fmac_f32 v{QA+e+1}, v{t0+1}, v{t0+1}"])
            for l in interleave(*st): a(l)
    def issue_w2(Sx, tag):
        p0, p1 = PAIR[Sx % 5]
        a(f"s_mul_i32 s33, s46, {p1 - p0}\ns_add_u32 s33, s33, s36\ns_add_u32 m0, s33, {p0}\ns_nop 0")
        for j in range(4): V.op(f"buffer_load_dwordx4 v2, s[8:11], s35 offen offset:{1024*j} sc1 lds")
        a("s_add_u32 m0, m0, 4096\ns_add_u32 s33, s35, 4096")
        V.op("buffer_load_dwordx4 v2, s[8:11], s33 offen sc1 lds", tag)
        if Sx < NS2 - 1: a(f"s_add_u32 s35, s35, 20480")
    for p in range(NS):
        t = p - 1 + R
        if p >= 1 and t < NS: issue_w(t); issue_h(t, t)
        if p == 0:
            for t in range(2, R): issue_h(t, t)
            stats(0, True)
        if p == 1:
            sk = a.label("one")
            a(f"s_and_b32 s33, s{S_NT}, 3\ns_cmp_lg_u32 s33, 3\ns_cbranch_scc1 {sk}")
            stats(1, False)
            a(f"{sk}:")
        if p == 2:
            for e in range(8): a(f"v_permlane32_swap_b32 v{SA+e}, v{QA+e}")
            for e in range(8): a(f"v_add_f32 v{SA+e}, v{SA+e}, v{QA+e}")
            for e in range(4): a(f"v_permlane16_swap_b32 v{SA+e}, v{SA+4+e}")
            for e in range(4): a(f"v_add_f32 v{SA+e}, v{SA+e}, v{SA+4+e}")
            for e in range(4): a(f"ds_write_b32 v10, v{SA+e} offset:{8*e}")
        if p == 3:
            a(f"v_add_u32 v13, {LP}, v12")
            for w in range(4): a(f"ds_read_b64 v[{24+2*w}:{25+2*w}], v13 offset:{1024*w}")
            a("""s_waitcnt lgkmcnt(0)
v_pk_add_f32 v[24:25], v[24:25], v[26:27]
v_pk_add_f32 v[28:29], v[28:29], v[30:31]
v_pk_add_f32 v[24:25], v[24:25], v[28:29]""")
            V.op("buffer_store_dwordx2 v[24:25], v12, s[8:11], s42 offen sc1")
        if p == 9:
            for kc in range(8):
                V.op(f"buffer_load_dword v{32+kc}, v8, s[8:11], s39 offen", "cs")
                if kc < 7: a(f"s_add_u32 s39, s39, {96*128}")
        if p == 11:
            V.wait("cs")
            a("""v_add_f32 v32, v32, v33
v_add_f32 v34, v34, v35
v_add_f32 v36, v36, v37
v_add_f32 v38, v38, v39
v_add_f32 v32, v32, v34
v_add_f32 v36, v36, v38
v_add_f32 v32, v32, v36
v_cvt_pk_bf16_f32 v33, v32, v32
v_lshlrev_b32 v33, 16, v33
v_sub_f32 v32, v32, v33
v_cvt_pk_bf16_f32 v34, v32, v32
v_lshlrev_b32 v34, 16, v34
v_sub_f32 v32, v32, v34
v_mov_b32 v38, 0
v_mov_b32 v39, 0
v_cvt_pk_bf16_f32 v36, v33, v34
v_cvt_pk_bf16_f32 v37, v32, v38
v_mov_b32 v40, 0
v_mov_b32 v41, 0
v_mov_b32 v42, 0
v_mov_b32 v43, 0
ds_write_b128 v9, v[36:39]
ds_write_b128 v9, v[40:43] offset:512""")
        if p == 14:
            for i in range(4): V.op(f"buffer_load_dwordx4 v[{44+4*i}:{47+4*i}], v2, s[8:11], s43 offen offset:{1024*i} sc1", "st")
        if p in (15, 17, 19): issue_w2((p - 15)//2, ("W2", (p - 15)//2))
        if p == 16:
            V.wait("st")
            ok = a.label("stok")
            a("""v_max3_u32 v60, v44, v45, v46
v_max3_u32 v60, v60, v47, v48
v_max3_u32 v60, v60, v49, v50
v_max3_u32 v60, v60, v51, v52
v_max3_u32 v60, v60, v53, v54
v_max3_u32 v60, v60, v55, v56
v_max3_u32 v60, v60, v57, v58
v_max_u32 v60, v60, v59
v_cmp_eq_u32 vcc, -1, v60""")
            a(f"s_cbranch_vccz {ok}")
            lp = a.label("stlp")
            a(f"s_mov_b32 s47, {SPIN}\n{lp}:")
            for i in range(4): a(f"buffer_load_dwordx4 v[{44+4*i}:{47+4*i}], v2, s[8:11], s43 offen offset:{1024*i} sc1")
            a("""s_waitcnt vmcnt(0)
v_max3_u32 v60, v44, v45, v46
v_max3_u32 v60, v60, v47, v48
v_max3_u32 v60, v60, v49, v50
v_max3_u32 v60, v60, v51, v52
v_max3_u32 v60, v60, v53, v54
v_max3_u32 v60, v60, v55, v56
v_max3_u32 v60, v60, v57, v58
v_max_u32 v60, v60, v59
v_cmp_eq_u32 vcc, -1, v60""")
            a(f"s_cbranch_vccz {ok}\ns_sub_u32 s47, s47, 1\ns_cmp_lg_u32 s47, 0\ns_cbranch_scc1 {lp}\n{ok}:")
            a(f"""v_pk_add_f32 v[44:45], v[44:45], v[48:49]
v_pk_add_f32 v[46:47], v[46:47], v[50:51]
v_pk_add_f32 v[52:53], v[52:53], v[56:57]
v_pk_add_f32 v[54:55], v[54:55], v[58:59]
v_add_u32 v13, s40, v2
v_pk_add_f32 v[44:45], v[44:45], v[52:53]
v_pk_add_f32 v[46:47], v[46:47], v[54:55]
ds_write_b128 v13, v[44:47]""")
        if p == 17:
            a(f"v_add_u32 v13, {LP}, v12")
            for w in range(4): a(f"ds_read_b64 v[{24+2*w}:{25+2*w}], v13 offset:{1024*w}")
            a(f"""v_lshlrev_b32 v13, 4, v11
v_add_u32 v13, {LT1}, v13
v_add_u32 v14, {LT2}, v12
s_waitcnt lgkmcnt(0)
v_pk_add_f32 v[24:25], v[24:25], v[26:27]
v_pk_add_f32 v[28:29], v[28:29], v[30:31]
v_pk_add_f32 v[24:25], v[24:25], v[28:29]""")
            ln_finalize(a, 24, 25)
            a(f"""v_rcp_f32 v26, v25
v_mul_f32 v27, v25, v25
v_cvt_pk_bf16_f32 v28, -v24, -v24
v_mul_f32 v26, {NLOG2E}, v26
v_mov_b32 v29, v28
v_mov_b32 v30, v28
v_mov_b32 v31, v28
ds_write_b64 v14, v[26:27]
ds_write_b128 v13, v[28:31]""")
        if p + 1 < NS: V.wait(p + 1)
        if p in (2, 11, 16, 17): a("s_waitcnt lgkmcnt(0)")
        bar(a)
        if p < 18: stamp(a, p, "g1")
    stamp(a, 6)
    issue_w2(3, ("W2", 3)); issue_w2(4, ("W2", 4))
    for j in range(3):
        a(f"s_add_u32 m0, s38, {LR + 1024*j}\ns_nop 0")
        V.op("buffer_load_dwordx4 v15, s[8:11], s37 offen sc1 lds")
        a(f"s_add_u32 s37, s37, {8*4096}")
    bar(a)
    sk = a.label("nopoll")
    a(f"s_cmp_lg_u32 s{S_W}, 0\ns_cbranch_scc1 {sk}")
    poll(a, ["buffer_load_dword v22, v18, s[8:11], s41 offen sc1"], [22], "0xffff")
    a(f"{sk}:")
    V.drain()
    bar(a)
    stamp(a, 7); stamp(a, 0, "g2")
    for p in range(NS2 - 1):
        if p >= 1 and p + 4 < NS2: issue_w2(p + 4, ("W2", p + 4))
        V.wait(("W2", p + 1))
        bar(a)
        stamp(a, p + 1, "g2")
    stamp(a, 10)
    a(f"s_branch {end}")

def emit_p(a):
    name = "main_kernel"
    Ctx.swave = 20; Ctx.vtmp = (254, 255)
    a.begin_kernel(name, 256, 512, LDSP)
    end = a.label("p_end"); end2 = a.label("p_exit"); hl = a.label("p_help"); nc = a.label("p_noconv"); idle = a.label("p_idle"); cdone = a.label("p_cdone")
    a(f"""s_cmp_ge_u32 s2, 256
s_cbranch_scc1 {end2}
s_load_dwordx2 s[4:5], s[0:1], 104
v_lshrrev_b32 v2, 6, v0
v_and_b32 v1, 63, v0
s_and_b32 s{S_XCD}, s2, 7
s_lshr_b32 s{S_J}, s2, 3
v_readfirstlane_b32 s20, v2
s_and_b32 s{S_MT}, s{S_XCD}, 1
s_lshl_b32 s{S_MT}, s{S_MT}, 3
s_and_b32 s26, s{S_J}, 7
s_add_u32 s{S_MT}, s{S_MT}, s26
s_lshr_b32 s{S_NT}, s{S_XCD}, 1
s_lshl_b32 s{S_NT}, s{S_NT}, 2
s_lshr_b32 s26, s{S_J}, 3
s_add_u32 s{S_NT}, s{S_NT}, s26
s_and_b32 s{S_W}, s20, 3""")
    stamp_init(a); stamp(a, 0)
    a(f"""s_cmp_ge_u32 s20, 4
s_cbranch_scc1 {hl}
s_cmp_ge_u32 s{S_J}, 20
s_cbranch_scc1 {nc}""")
    emit_conv(a)
    a(f"s_branch {cdone}\n{nc}:\ns_cmp_ge_u32 s{S_J}, 30\ns_cbranch_scc1 {idle}")
    emit_fmt2(a)
    a(f"s_branch {cdone}\n{idle}:\ns_mov_b32 s36, {WS_F1 + 240*64}\ns_waitcnt lgkmcnt(0)")
    a.srd(8, 4, WS_SIZE)
    bar(a)
    a(f"{cdone}:\ns_waitcnt vmcnt(0)")
    bar(a)
    signal(a, 36, 2)
    stamp(a, 3)
    emit_g1_cons(a)
    emit_g2_cons(a, end)
    a(f"{hl}:"); emit_helper(a, end)
    a(f"{end}:")
    stamp_flush(a, 1)
    a(f"{end2}:\ns_endpgm\nmain_code_end:")
    a.end_kernel(name, 256, sgpr=100)
```

```python
import sys
from gen_common import *
import gen_l1, gen_p
def build(diag=False):
    Ctx.diag = diag
    a = Asm()
    gen_l1.emit_l1(a)
    gen_p.emit_p(a)
    ref = open("sequential_preLN__ssm_conv_s4d__swiglu_ffn__prompt.s.ref").read().split("\n")
    hdr = "\n".join(l for l in ref[:16] if l.startswith(";") and "@launch" not in l and "Override" not in l and "grid=ceil" not in l)
    t = a.text(hdr)
    from asmlib import verify, barrier_counts
    pr = verify(a.final)
    assert not pr, pr
    print("barrier counts:", {k: barrier_counts(a.final, k) for k in ("prep_kernel", "main_kernel")})
    return t, a.nops
if __name__ == "__main__":
    t, n = build(len(sys.argv) > 2 and sys.argv[2] == "diag")
    open(sys.argv[1], "w").write(t)
    print("written", sys.argv[1], len(t), "bytes; wait states inserted:", n)
```
